```python
import torch

def _softmax(x, axis=-1):
    return torch.softmax(x, dim=axis)
def _gelu(x):
    return torch.nn.functional.gelu(x, approximate="tanh")
def _silu(x):
    return torch.nn.functional.silu(x)
def _sigmoid(x):
    return torch.sigmoid(x)
def _layernorm(x, axis=-1, eps=1e-5):
    m = x.mean(dim=axis, keepdim=True)
    v = x.var(dim=axis, keepdim=True, unbiased=False)
    return (x - m) / torch.sqrt(v + eps)
def _scatter_add(tgt, idx, src, axis=0):
    return tgt.clone().index_add_(axis, idx, src)
def _segment_sum(src, seg, n):
    out = torch.zeros((n,) + src.shape[1:], dtype=src.dtype)
    return out.index_add_(0, seg, src)
def _pad(x, pw):
    flat = tuple(v for pair in reversed(pw) for v in pair)
    return torch.nn.functional.pad(x, flat)

kernel_name = 'standalone__mha_block_cached__near_ridge'

def setup_inputs():

    _w = (lambda a: (lambda t: t.to(torch.bfloat16) if t.is_floating_point() else t)(torch.as_tensor(a)))
    B, Sq, D = 8, 160, 640
    H, Sk, Dh = 32, 512, 192
    return {
        "x": _w((lambda *s: torch.randn(*s, dtype=torch.bfloat16) * 0.8)(B, Sq, D)),
        "k_cache": _w((lambda *s: torch.randn(*s, dtype=torch.bfloat16) * 0.8)(B, H, Sk, Dh)),
        "v_cache": _w((lambda *s: torch.randn(*s, dtype=torch.bfloat16) * 0.05)(B, H, Sk, Dh)),
        "wq": _w((lambda *s: torch.randn(*s, dtype=torch.bfloat16) * 0.8)(D, H * Dh) * (D ** -0.5)),
        "wo": _w((lambda *s: torch.randn(*s, dtype=torch.bfloat16) * 0.05)(H * Dh, D) * ((H * Dh) ** -0.5)),
    }

def reference(x, k_cache, v_cache, wq, wo):
    B, Sq, D = x.shape
    H, Dh = 32, 192
    q = (lambda x, *d: x.permute(*d))((x @ wq).reshape(B, Sq, H, Dh), 0, 2, 1, 3)
    scores = torch.einsum("bhqd,bhkd->bhqk", q, k_cache) * (Dh ** -0.5)
    p = _softmax(scores, axis=-1)
    o = torch.einsum("bhqk,bhkd->bhqd", p, v_cache)
    return (lambda x, *d: x.permute(*d))(o, 0, 2, 1, 3).reshape(B, Sq, H * Dh) @ wo
```

```python
class Reg:
    __slots__ = ("k", "i", "n")
    def __init__(self, k, i, n=1):
        self.k, self.i, self.n = k, i, n
    def __str__(self):
        return f"{self.k}{self.i}" if self.n == 1 else f"{self.k}[{self.i}:{self.i+self.n-1}]"
    __repr__ = __str__
    def sub(self, off, n=1):
        assert off + n <= self.n, (self, off, n)
        return Reg(self.k, self.i + off, n)
    def regs(self):
        return [(self.k, self.i + j) for j in range(self.n)]
def V(i, n=1): return Reg("v", i, n)
def A(i, n=1): return Reg("a", i, n)
def S(i, n=1): return Reg("s", i, n)

def _regs(x):
    out = []
    if x is None: return out
    if isinstance(x, Reg): return x.regs()
    if isinstance(x, (list, tuple)):
        for y in x: out += _regs(y)
    return out

TRANS = ("v_exp_f32", "v_log_f32", "v_rcp_f32", "v_rsq_f32", "v_sqrt_f32")

class Em:
    def __init__(self):
        self.lines = []
        self.reset_state()
        self.uid = 0
        self.stats = {}
    def reset_state(self):
        self.t = 0
        self.mfma_w = {}
        self.mfma_c = {}
        self.valu_w = {}
        self.trans_w = {}
        self.sgpr_valu_w = {}
        self.store_d = {}
        self.m0_t = -100
        self.exec_t = -100
        self.dsq = []
        self.ds_seq = 0
        self.ds_pend = {}
        self.vmq = []
        self.vm_seq = 0
        self.vm_pend = {}
    def out(self, s, states=1):
        self.lines.append("    " + s)
        self.t += states
        op = s.split()[0]
        self.stats[op] = self.stats.get(op, 0) + 1
    def label(self, name):
        self.lines.append(name + ":")
    def comment(self, s):
        self.lines.append("    ; " + s)
    def nop(self, n):
        while n > 0:
            k = min(n, 16)
            self.out(f"s_nop {k-1}", states=k)
            n -= k
    def _need(self, tp, req):
        gap = self.t - tp
        if gap < req: self.nop(req - gap)
    def _wait_ds_for(self, regs):
        mx = -1
        for r in regs:
            if r in self.ds_pend: mx = max(mx, self.ds_pend[r])
        if mx >= 0:
            n = sum(1 for (s, _) in self.dsq if s > mx)
            self.wait(lgkm=min(n, 15))
    def _wait_vm_for(self, regs):
        mx = -1
        for r in regs:
            if r in self.vm_pend: mx = max(mx, self.vm_pend[r])
        if mx >= 0:
            n = sum(1 for (s, _) in self.vmq if s > mx)
            self.wait(vm=min(n, 63))
    def wait(self, vm=None, lgkm=None):
        parts = []
        if vm is not None:
            parts.append(f"vmcnt({vm})")
            if len(self.vmq) > vm:
                done = self.vmq[:len(self.vmq) - vm]; self.vmq = self.vmq[len(self.vmq) - vm:]
                mx = done[-1][0]
                self.vm_pend = {r: s for r, s in self.vm_pend.items() if s > mx}
        if lgkm is not None:
            parts.append(f"lgkmcnt({lgkm})")
            if len(self.dsq) > lgkm:
                done = self.dsq[:len(self.dsq) - lgkm]; self.dsq = self.dsq[len(self.dsq) - lgkm:]
                mx = done[-1][0]
                self.ds_pend = {r: s for r, s in self.ds_pend.items() if s > mx}
        self.out("s_waitcnt " + " ".join(parts))
    def wait_tag(self, tag, extra_lgkm=None):
        mx = -1
        for (s, t) in self.vmq:
            if t == tag: mx = s
        if mx >= 0:
            n = sum(1 for (s, _) in self.vmq if s > mx)
            self.wait(vm=min(n, 63), lgkm=extra_lgkm)
        elif extra_lgkm is not None:
            self.wait(lgkm=extra_lgkm)
    def barrier(self):
        self.out("s_barrier")
    def _pre(self, reads, writes, kind):
        rr = _regs(reads); ww = _regs(writes)
        self._wait_ds_for(rr + ww)
        self._wait_vm_for(rr + ww)
        if kind in ("valu", "ds", "vm"):
            for r in rr + (ww if kind == "valu" or True else []):
                if r in self.mfma_w: self._need(self.mfma_w[r][0], 8)
        if kind == "valu":
            for r in ww:
                if r in self.mfma_c: self._need(self.mfma_c[r], 3)
                if r in self.store_d: self._need(self.store_d[r], 2)
            for r in rr:
                if r[0] == "s" and r in self.sgpr_valu_w: self._need(self.sgpr_valu_w[r], 2)
        if kind == "vm":
            for r in rr:
                if r[0] == "s" and r in self.sgpr_valu_w: self._need(self.sgpr_valu_w[r], 5)
        return rr, ww
    def valu(self, op, dst, *srcs, mods="", extra_reads=None):
        reads = []; txt = []
        for s in srcs:
            if isinstance(s, tuple): txt.append(s[0]); reads.append(s[1])
            elif isinstance(s, Reg): txt.append(str(s)); reads.append(s)
            elif isinstance(s, int): txt.append(str(s) if -16 <= s <= 64 else hex(s & 0xffffffff))
            else: txt.append(str(s))
        if extra_reads: reads.append(extra_reads)
        rr, ww = self._pre(reads, dst, "valu")
        base = op.replace("_e32", "").replace("_e64", "")
        if base not in TRANS:
            for r in rr:
                if r in self.trans_w: self._need(self.trans_w[r], 1)
        if base.startswith("v_permlane"):
            for r in rr + ww:
                if r in self.valu_w: self._need(self.valu_w[r], 2)
        if base in ("v_readfirstlane_b32", "v_readlane_b32"):
            for r in rr:
                if r in self.valu_w: self._need(self.valu_w[r], 1)
        self.out(f"{op} {dst}, " + ", ".join(txt) + (" " + mods if mods else "") if txt else f"{op} {dst}")
        wregs = ww + (rr if base.startswith("v_permlane") else [])
        for r in wregs:
            if r[0] == "s": self.sgpr_valu_w[r] = self.t
            else:
                self.valu_w[r] = self.t
                self.mfma_w.pop(r, None)
                if base in TRANS: self.trans_w[r] = self.t
                else: self.trans_w.pop(r, None)
    def salu(self, text):
        self.out(text)
        if text.split()[1].rstrip(",") == "m0": self.m0_t = self.t
    def mfma(self, d, a, b, c):
        reads_ab = _regs(a) + _regs(b)
        cr = _regs(c) if isinstance(c, Reg) else []
        dr = _regs(d)
        self._wait_ds_for(reads_ab + cr + dr)
        self._wait_vm_for(reads_ab + cr + dr)
        for r in reads_ab + cr:
            if r in self.valu_w: self._need(self.valu_w[r], 2)
        for r in reads_ab:
            if r in self.mfma_w: self._need(self.mfma_w[r][0], 8)
        key = (d.k, d.i, d.n)
        for r in cr:
            if r in self.mfma_w and self.mfma_w[r][1] != (c.k, c.i, c.n): self._need(self.mfma_w[r][0], 6)
        for r in dr:
            if r in self.mfma_w and self.mfma_w[r][1] != key: self._need(self.mfma_w[r][0], 6)
            if r in self.mfma_w and not cr: self._need(self.mfma_w[r][0], 6)
        ctxt = str(c) if isinstance(c, Reg) else str(c)
        self.out(f"v_mfma_f32_16x16x32_bf16 {d}, {a}, {b}, {ctxt}")
        for r in dr:
            self.mfma_w[r] = (self.t, key); self.valu_w.pop(r, None)
        for r in cr: self.mfma_c[r] = self.t
    def ds_read(self, op, dst, addr, offset=0):
        assert 0 <= offset < 65536, offset
        rr, ww = self._pre([addr], dst, "ds")
        for r in ww:
            if r in self.mfma_c: self._need(self.mfma_c[r], 3)
        self.out(f"{op} {dst}, {addr}" + (f" offset:{offset}" if offset else ""))
        self.ds_seq += 1
        self.dsq.append((self.ds_seq, None))
        for r in ww:
            self.ds_pend[r] = self.ds_seq; self.valu_w.pop(r, None); self.mfma_w.pop(r, None)
    def ds_write(self, op, addr, data, offset=0):
        assert 0 <= offset < 65536, offset
        self._pre([addr, data], None, "ds")
        self.out(f"{op} {addr}, {data}" + (f" offset:{offset}" if offset else ""))
        self.ds_seq += 1
        self.dsq.append((self.ds_seq, None))
    def dma(self, voff, srd, soff, tag=None, flags="", offset=0):
        self._pre([voff, srd] + ([soff] if isinstance(soff, Reg) else []), None, "vm")
        self._need(self.m0_t, 1)
        self.out(f"buffer_load_dwordx4 {voff}, {srd}, {soff} offen" + (f" offset:{offset}" if offset else "") + (" " + flags if flags else "") + " lds")
        self.vm_seq += 1
        self.vmq.append((self.vm_seq, tag))
    def buf_load(self, op, dst, voff, srd, soff, offset=0, flags="", tag=None):
        rr, ww = self._pre([voff, srd] + ([soff] if isinstance(soff, Reg) else []), dst, "vm")
        self.out(f"{op} {dst}, {voff}, {srd}, {soff} offen" + (f" offset:{offset}" if offset else "") + (" " + flags if flags else ""))
        self.vm_seq += 1
        self.vmq.append((self.vm_seq, tag))
        for r in ww:
            self.vm_pend[r] = self.vm_seq; self.valu_w.pop(r, None); self.mfma_w.pop(r, None)
    def buf_store(self, op, data, voff, srd, soff, offset=0, flags="", tag=None):
        rr, _ = self._pre([data, voff, srd] + ([soff] if isinstance(soff, Reg) else []), None, "vm")
        self.out(f"{op} {data}, {voff}, {srd}, {soff} offen" + (f" offset:{offset}" if offset else "") + (" " + flags if flags else ""))
        self.vm_seq += 1
        self.vmq.append((self.vm_seq, tag))
        for r in _regs(data): self.store_d[r] = self.t
    def text(self):
        return "\n".join(self.lines) + "\n"

def interleave(em, mfmas, fillers):
    by = {}
    for pos, f in fillers:
        pos = min(pos, len(mfmas) - 1)
        by.setdefault(pos, []).append(f)
    for f in by.get(-1, []): f()
    for i, m in enumerate(mfmas):
        m()
        for f in by.get(i, []): f()

def spread(items, start, end):
    n = len(items)
    if n == 0: return []
    span = end - start + 1
    return [(start + (i * span) // n, it) for i, it in enumerate(items)]
```

```python
from emit import *
import math

KB = 1024
XR = 72*KB;  XSLOT = 20*KB
WR = 112*KB; WSLOT = 12*KB
QX = 72*KB
SMALL = 156*KB
MX = SMALL; LX = SMALL + 2*KB
OX = 116*KB
KCH = 24*KB; VCH = 16*KB
LDS_TOTAL = 160*KB

WS_O = 0
WS_PART = 16*1024*1024
WS_DBG = 64*1024*1024

SCALE_LOG2E = math.log2(math.e) / math.sqrt(192.0)
import struct
def f32bits(x): return struct.unpack("<I", struct.pack("<f", x))[0]

sX, sWQ, sK, sV, sO = S(8,4), S(12,4), S(16,4), S(20,4), S(24,4)
sW, sB, sH, sT0 = S(28), S(29), S(30), S(31)
sWqIdx, sWqOff, sXIdx, sXOff = S(32), S(33), S(34), S(35)
sT1, sT2, sT3 = S(46), S(47), S(48)
sC = S(49)
sLK, sLV, sVsrc, sLWQ = S(50), S(51), S(52), S(53)
sCnt, sNL = S(54), S(55)
sKsrc, sKlds = S(56), S(57)
sOoff = S(58)
sDbg = S(60,4)

vL = V(0)
vT = [V(i) for i in range(1,8)]
vA = [V(8+i) for i in range(6)]
vB = [V(14), V(15)]
vD = [V(16+i) for i in range(6)]
vQW, vQR = V(22), V(23)
vKb = [V(24), V(25)]
vKc = [[V(26), V(27)], [V(28), V(29)]]
vKD = [V(30), V(31), V(32)]
vVD = V(33)
vVb = V(34)
vVc = [[V(36+i) for i in range(4)], [V(40+i) for i in range(4)]]
vOnes = V(44,4)
vM = [V(248+i) for i in range(5)]
vMW, vMR = V(253), V(254)
QACC = 48; QAF = 168; QBF = 216
def qacc(dt, qt): return V(QACC + (dt*5+qt)*4, 4)
def qA(buf, dt): return V(QAF + buf*24 + dt*4, 4)
def qB(buf, qt): return V(QBF + buf*20 + qt*4, 4)
def Qf(s, qt): return A((s*5+qt)*4, 4)
def Kf(n): return A(120 + (n % 4)*4, 4)
def Sreg(kt, qt):
    j, tau = kt >> 1, kt & 1
    if j >= 3: return V(48 + ((j-3)*5+qt)*8 + 4*tau, 4)
    return A(136 + (j*5+qt)*8 + 4*tau, 4)
def hole(bk): return V(48 + bk*8 + 4, 4)
def Preg(j, qt):
    if j >= 3: return V(48 + ((j-3)*5+qt)*8, 4)
    return hole(j*5+qt)
def Oacc(st, a, qt): return A(st*80 + (a*5+qt)*4, 4)
def Lacc(qt): return A(160 + qt*4, 4)
def Vf(n): return A(180 + (n % 4)*4, 4)
vR = [V(8+i) for i in range(5)]
vOW, vOR, vOS, vLW, vLR = V(13), V(14), V(15), V(16), V(17)

class Cfg:
    kv_flags = "nt"
    w_flags = ""
    dump = None
    kpre_per_step = 6

def mul_const(em, dst, src, c, stmp):
    if c < (1 << 24) and True:
        em.valu("v_mul_u32_u24", dst, c, src)
    else:
        em.salu(f"s_mov_b32 {stmp}, {c}")
        em.valu("v_mul_lo_u32", dst, src, stmp)

def div24(em, row, pos, C, tmp):
    em.valu("v_mul_u32_u24", row, 2731, C)
    em.valu("v_lshrrev_b32", row, 16, row)
    em.valu("v_mul_u32_u24", tmp, 24, row)
    em.valu("v_sub_u32", pos, C, tmp)

def srd(em, s, lo, hi, size):
    em.salu(f"s_mov_b32 {s.sub(0)}, {lo}")
    em.salu(f"s_mov_b32 {s.sub(1)}, {hi}")
    em.salu(f"s_mov_b32 {s.sub(2)}, {size}")
    em.salu(f"s_mov_b32 {s.sub(3)}, 0x20000")

def srd_off(em, s, lo, hi, off_s, size):
    em.salu(f"s_add_u32 {s.sub(0)}, {lo}, {off_s}")
    em.salu(f"s_addc_u32 {s.sub(1)}, {hi}, 0")
    em.salu(f"s_mov_b32 {s.sub(2)}, {size}")
    em.salu(f"s_mov_b32 {s.sub(3)}, 0x20000")

def prologue(em, cfg):
    em.salu("s_cmp_ge_u32 s2, 256")
    em.salu("s_cbranch_scc1 K1_END")
    em.out("s_load_dwordx4 s[36:39], s[0:1], 0")
    em.out("s_load_dwordx4 s[40:43], s[0:1], 16")
    em.out("s_load_dwordx2 s[44:45], s[0:1], 56")
    if cfg.dump: em.out("s_load_dwordx2 s[4:5], s[0:1], 56")
    em.valu("v_lshrrev_b32", vT[0], 6, V(0))
    em.valu("v_and_b32", vL, 63, V(0))
    em.valu("v_readfirstlane_b32", sW, vT[0])
    em.salu("s_and_b32 s3, s2, 7")
    em.salu("s_lshr_b32 s4, s2, 3" if not cfg.dump else "s_lshr_b32 s6, s2, 3")
    slot = "s4" if not cfg.dump else "s6"
    em.salu(f"s_and_b32 {sT0}, {slot}, 3")
    em.salu(f"s_lshl_b32 s3, s3, 2")
    em.salu(f"s_add_u32 {sH}, s3, {sT0}")
    em.salu(f"s_lshr_b32 {sB}, {slot}, 2")
    em.salu(f"s_mul_i32 {sT1}, {sT0}, 3")
    em.salu(f"s_add_u32 {sT1}, {sT1}, {sB}")
    em.salu(f"s_cmp_ge_u32 {sT1}, 10")
    em.salu(f"s_cselect_b32 {sT2}, 10, 0")
    em.salu(f"s_sub_u32 {sXIdx}, {sT1}, {sT2}")
    em.salu(f"s_lshl_b32 {sWqIdx}, {sXIdx}, 1")
    em.salu(f"s_lshl_b32 {sXOff}, {sXIdx}, 7")
    em.salu(f"s_mul_i32 {sWqOff}, {sWqIdx}, 393216")
    em.salu(f"s_mov_b32 {sC}, {hex(f32bits(SCALE_LOG2E))}")
    u, g, t0, t1, t2, t3 = vT[1], vT[2], vT[3], vT[4], vT[5], vT[6]
    em.valu("v_and_b32", u, 15, vL)
    em.valu("v_lshrrev_b32", g, 4, vL)
    em.out("s_waitcnt lgkmcnt(0)")
    em.salu(f"s_mul_i32 {sT1}, {sB}, 204800")
    srd_off(em, sX, "s36", "s37", sT1, 204800)
    em.salu(f"s_mul_i32 {sT1}, {sH}, 384")
    em.salu(f"s_sub_u32 {sT2}, 7864320, {sT1}")
    srd_off(em, sWQ, "s42", "s43", sT1, sT2)
    em.salu(f"s_lshl_b32 {sT1}, {sB}, 5")
    em.salu(f"s_add_u32 {sT1}, {sT1}, {sH}")
    em.salu(f"s_mul_i32 {sOoff}, {sT1}, 61440")
    em.salu(f"s_mul_i32 {sT1}, {sT1}, 196608")
    srd_off(em, sK, "s38", "s39", sT1, 196608)
    srd_off(em, sV, "s40", "s41", sT1, 196608)
    srd(em, sO, "s44", "s45", 0x10000000)
    if cfg.dump: srd(em, sDbg, "s4", "s5", 0x10000000)
    return u, g

def role_branch(em):
    em.salu(f"s_cmp_eq_u32 {sW}, 2")
    em.salu("s_cbranch_scc1 K1_ROLE_X")
    em.salu(f"s_cmp_eq_u32 {sW}, 3")
    em.salu("s_cbranch_scc1 K1_ROLE_K")

def pat_wq(em):
    C, row, pos, t, f = vT[0], vT[3], vT[4], vT[5], vT[6]
    em.salu(f"s_lshl_b32 {sT1}, {sW}, 4")
    em.salu(f"s_mul_i32 {sLWQ}, {sW}, 6144")
    for i in range(6):
        em.valu("v_add_u32", C, 64*i, vL)
        div24(em, row, pos, C, t)
        em.valu("v_add_u32", row, sT1, row)
        em.valu("v_bfe_u32", f, row, 1, 1)
        em.valu("v_bfe_u32", t, row, 3, 1)
        em.valu("v_lshl_or_b32", f, t, 1, f)
        em.valu("v_lshrrev_b32", t, 1, pos)
        em.valu("v_xor_b32", t, t, f)
        em.valu("v_and_b32", pos, 1, pos)
        em.valu("v_lshlrev_b32", pos, 4, pos)
        em.valu("v_lshl_or_b32", t, t, 5, pos)
        em.valu("v_mul_u32_u24", row, 12288, row)
        em.valu("v_add_u32", vD[i], row, t)

def pat_x(em):
    row, pos, f = vT[3], vT[4], vT[5]
    for par in range(2):
        em.valu("v_lshrrev_b32", row, 3, vL)
        em.valu("v_and_b32", pos, 7, vL)
        em.valu("v_lshrrev_b32", f, 4, vL)
        if par: em.valu("v_add_u32", f, 4, f)
        em.valu("v_xor_b32", pos, pos, f)
        em.valu("v_lshlrev_b32", pos, 4, pos)
        em.valu("v_mul_u32_u24", row, 1280, row)
        em.valu("v_add_u32", vD[par], row, pos)

def pat_k(em, dst, par):
    C, row, pos, t, f = vT[0], vT[3], vT[4], vT[5], vT[6]
    for i in range(3):
        em.valu("v_add_u32", C, 64*i, vL)
        div24(em, row, pos, C, t)
        em.valu("v_lshrrev_b32", f, 1, row)
        if isinstance(par, Reg): em.valu("v_add_u32", f, par, f)
        elif par: em.valu("v_add_u32", f, 4*par, f)
        em.valu("v_xor_b32", pos, pos, f)
        em.valu("v_lshlrev_b32", pos, 4, pos)
        em.valu("v_mul_u32_u24", row, 384, row)
        em.valu("v_add_u32", dst[i], row, pos)

def common_addr(em, u, g):
    t0, t1, t2, t3 = vT[0], vT[3], vT[4], vT[5]
    f = vT[6]
    em.salu(f"s_and_b32 {sT1}, {sW}, 1")
    em.salu(f"s_lshr_b32 {sT2}, {sW}, 1")
    em.valu("v_lshrrev_b32", t0, 2, u)
    em.valu("v_and_b32", t1, 3, u)
    em.valu("v_lshl_add_u32", t2, g, 3, t0)
    em.valu("v_mul_u32_u24", t2, 384, t2)
    em.valu("v_lshl_add_u32", t2, t1, 3, t2)
    em.valu("v_add_u32", t2, WR, t2)
    em.valu("v_bfe_u32", f, u, 3, 1)
    em.valu("v_and_b32", t3, 1, g)
    em.valu("v_lshl_or_b32", f, t3, 1, f)
    em.salu(f"s_mul_i32 {sT3}, {sT2}, 6")
    for dt in range(6):
        em.salu(f"s_add_u32 {sT0}, {sT3}, {dt}")
        em.valu("v_xor_b32", t3, sT0, f)
        em.valu("v_lshl_add_u32", vA[dt], t3, 5, t2)
    em.salu(f"s_mul_i32 {sT0}, {sT1}, {80*128}")
    em.salu(f"s_add_u32 {sT0}, {sT0}, {XR}")
    em.valu("v_lshlrev_b32", t0, 7, u)
    em.valu("v_add_u32", t0, sT0, t0)
    em.valu("v_bfe_u32", f, u, 1, 3)
    em.valu("v_xor_b32", t1, g, f)
    em.valu("v_lshl_add_u32", vB[0], t1, 4, t0)
    em.valu("v_xor_b32", vB[1], 64, vB[0])
    em.salu(f"s_mul_i32 {sT0}, {sT2}, {30*1024}")
    em.salu(f"s_mul_i32 {sT3}, {sT1}, {5*1024}")
    em.salu(f"s_add_u32 {sT0}, {sT0}, {sT3}")
    em.salu(f"s_add_u32 {sT0}, {sT0}, {QX}")
    em.valu("v_lshrrev_b32", t0, 1, g)
    em.valu("v_lshl_add_u32", t0, t0, 4, u)
    em.valu("v_lshlrev_b32", t0, 4, t0)
    em.valu("v_and_b32", t1, 1, g)
    em.valu("v_lshl_add_u32", t0, t1, 3, t0)
    em.valu("v_add_u32", vQW, sT0, t0)
    em.salu(f"s_add_u32 {sT0}, {sT3}, {QX}")
    em.valu("v_lshlrev_b32", t0, 4, vL)
    em.valu("v_add_u32", vQR, sT0, t0)
    em.salu(f"s_mul_i32 {sT0}, {sT2}, 12288")
    em.valu("v_mul_u32_u24", t0, 384, u)
    em.valu("v_add_u32", t0, sT0, t0)
    em.valu("v_bfe_u32", f, u, 1, 3)
    em.valu("v_xor_b32", t1, g, f)
    em.valu("v_lshl_add_u32", vKb[0], t1, 4, t0)
    em.valu("v_xor_b32", t1, 4, t1)
    em.valu("v_lshl_add_u32", vKb[1], t1, 4, t0)
    em.salu(f"s_lshl_b32 {sT0}, {sT1}, 2")
    pat_k(em, vKD, sT0)
    em.salu(f"s_mul_i32 {sLK}, {sW}, 3072")
    em.valu("v_lshrrev_b32", t0, 3, vL)
    em.valu("v_mul_u32_u24", t0, 384, t0)
    em.valu("v_bfe_u32", t1, vL, 1, 2)
    em.valu("v_bfe_u32", f, vL, 4, 2)
    em.valu("v_xor_b32", t1, t1, f)
    em.valu("v_lshl_add_u32", t0, t1, 5, t0)
    em.valu("v_and_b32", t1, 1, vL)
    em.valu("v_lshl_add_u32", vVD, t1, 4, t0)
    em.salu(f"s_lshl_b32 {sLV}, {sW}, 12")
    em.salu(f"s_lshl_b32 {sT0}, {sT2}, 8")
    em.salu(f"s_lshl_b32 {sT3}, {sT1}, 5")
    em.salu(f"s_add_u32 {sT0}, {sT0}, {sT3}")
    em.salu(f"s_mul_i32 {sVsrc}, {sT0}, 384")
    em.valu("v_lshrrev_b32", t0, 2, u)
    em.valu("v_lshl_add_u32", t1, g, 2, t0)
    em.valu("v_bfe_u32", f, t1, 1, 2)
    em.salu(f"s_lshl_b32 {sT0}, {sT2}, 1")
    em.valu("v_xor_b32", f, sT0, f)
    em.valu("v_lshlrev_b32", t1, 7, t1)
    em.valu("v_lshl_add_u32", t1, f, 5, t1)
    em.valu("v_and_b32", t0, 3, u)
    em.valu("v_lshl_add_u32", t1, t0, 3, t1)
    em.salu(f"s_lshl_b32 {sT0}, {sT2}, 13")
    em.valu("v_add_u32", vVb, sT0, t1)

def q_reads(em, buf, wslot, xslot, sp):
    out = []
    for qt in range(5):
        out.append(lambda qt=qt: em.ds_read("ds_read_b128", qB(buf, qt), vB[sp], xslot*XSLOT + qt*2048))
    for dt in range(6):
        for hf in range(2):
            out.append(lambda dt=dt, hf=hf: em.ds_read("ds_read_b64_tr_b16", qA(buf, dt).sub(2*hf, 2), vA[dt], wslot*WSLOT + hf*1536))
    order = [0, 5, 6, 1, 2, 7, 8, 3, 4, 9, 10, 11, 12, 13, 14, 15, 16]
    return [out[i] for i in order]

def q_step(em, i, first, dma_fill):
    cur, nxt = i & 1, (i+1) & 1
    mf = []
    for dt in range(6):
        for qt in range(5):
            mf.append(lambda dt=dt, qt=qt: em.mfma(qacc(dt,qt), qA(cur,dt), qB(cur,qt), qacc(dt,qt)))
    n1 = (i+1) % 4
    rd = q_reads(em, nxt, n1, (n1 >> 1) & 1, n1 & 1)
    fill = spread(rd, 0, 20) + dma_fill
    fill.sort(key=lambda x: x[0])
    interleave(em, mf, fill)

def adv_wq(em):
    em.salu(f"s_add_u32 {sWqIdx}, {sWqIdx}, 1")
    em.salu(f"s_cmp_eq_u32 {sWqIdx}, 20")
    em.salu(f"s_cselect_b32 {sWqIdx}, 0, {sWqIdx}")
    em.salu(f"s_mul_i32 {sWqOff}, {sWqIdx}, 393216")
def adv_x(em):
    em.salu(f"s_add_u32 {sXIdx}, {sXIdx}, 1")
    em.salu(f"s_cmp_eq_u32 {sXIdx}, 10")
    em.salu(f"s_cselect_b32 {sXIdx}, 0, {sXIdx}")
    em.salu(f"s_lshl_b32 {sXOff}, {sXIdx}, 7")

def wq_pieces(em, cfg, slot):
    out = []
    for p in range(6):
        out.append(lambda p=p: em.salu(f"s_add_u32 m0, {sLWQ}, {WR + slot*WSLOT + p*1024}"))
        out.append(lambda p=p: em.dma(vD[p], sWQ, sWqOff, flags=cfg.w_flags))
    out.append(lambda: adv_wq(em))
    return out
def x_pieces(em, cfg, slot):
    out = []
    for p in range(20):
        def a(p=p):
            em.salu(f"s_mov_b32 m0, {XR + slot*XSLOT + p*1024}")
            em.salu(f"s_add_u32 {sT1}, {sXOff}, {p*10240}")
        out.append(a)
        out.append(lambda p=p: em.dma(vD[p & 1], sX, sT1, flags=cfg.w_flags))
    out.append(lambda: adv_x(em))
    return out
def kpre_pieces(em, cfg, n0, n1):
    out = []
    for n in range(n0, n1):
        kh, rg, i = n // 12, (n % 12) // 3, n % 3
        def a(n=n, kh=kh, rg=rg):
            em.salu(f"s_add_u32 m0, {sKlds}, {n*1024}")
            em.salu(f"s_add_u32 {sT1}, {sKsrc}, {(256*kh + 8*rg)*384}")
        out.append(a)
        out.append(lambda i=i, rg=rg: em.dma(vD[3*(rg & 1) + i], sK, sT1, flags=cfg.kv_flags))
    return out

def q_zero(em):
    for dt in range(6):
        for qt in range(5):
            for e in range(4): em.valu("v_mov_b32", qacc(dt,qt).sub(e), 0)
def q_prologue_reads(em):
    em.barrier()
    for f in q_reads(em, 0, 0, 0, 0): f()

def q_phase(em, cfg, u, g):
    role_branch(em)
    pat_wq(em)
    for s in range(4):
        for f in wq_pieces(em, cfg, s): f()
    common_addr(em, u, g)
    q_zero(em)
    em.out("s_waitcnt vmcnt(18)")
    q_prologue_reads(em)
    em.out("s_waitcnt vmcnt(12) lgkmcnt(0)"); em.barrier()
    em.salu(f"s_mov_b32 {sCnt}, 4")
    em.salu(f"s_mov_b32 {sNL}, 1")
    em.reset_state()
    em.label("K1_LOOP_WQ")
    for i in range(4):
        q_step(em, i, False, spread(wq_pieces(em, cfg, i), 1, 26))
        em.out("s_waitcnt vmcnt(12) lgkmcnt(0)"); em.dsq = []; em.ds_pend = {}
        em.barrier()
    em.salu(f"s_sub_u32 {sCnt}, {sCnt}, 1")
    em.salu(f"s_cmp_lg_u32 {sCnt}, 0")
    em.salu("s_cbranch_scc1 K1_LOOP_WQ")
    em.salu("s_branch K1_NL")
    em.reset_state()
    em.label("K1_ROLE_X")
    pat_x(em)
    for p in range(2):
        for f in x_pieces(em, cfg, p): f()
    common_addr(em, u, g)
    q_zero(em)
    em.out("s_waitcnt vmcnt(20)")
    q_prologue_reads(em)
    em.out("s_waitcnt lgkmcnt(0)"); em.barrier()
    em.salu(f"s_mov_b32 {sCnt}, 4")
    em.salu(f"s_mov_b32 {sNL}, 1")
    em.reset_state()
    em.label("K1_LOOP_X")
    for i in range(4):
        fl = spread(x_pieces(em, cfg, (i >> 1) & 1), 0, 27) if (i & 1) else []
        q_step(em, i, False, fl)
        if i % 2 == 0: em.out("s_waitcnt vmcnt(0) lgkmcnt(0)")
        else: em.out("s_waitcnt lgkmcnt(0)")
        em.dsq = []; em.ds_pend = {}
        em.barrier()
    em.salu(f"s_sub_u32 {sCnt}, {sCnt}, 1")
    em.salu(f"s_cmp_lg_u32 {sCnt}, 0")
    em.salu("s_cbranch_scc1 K1_LOOP_X")
    em.salu("s_branch K1_NL")
    em.reset_state()
    em.label("K1_ROLE_K")
    pat_k(em, vD[0:3], 0)
    pat_k(em, vD[3:6], 1)
    em.salu(f"s_mov_b32 {sKsrc}, 0")
    em.salu(f"s_mov_b32 {sKlds}, 0")
    common_addr(em, u, g)
    q_zero(em)
    q_prologue_reads(em)
    em.out("s_waitcnt lgkmcnt(0)"); em.barrier()
    em.salu(f"s_mov_b32 {sCnt}, 3")
    em.salu(f"s_mov_b32 {sNL}, 2")
    em.reset_state()
    em.label("K1_LOOP_K")
    for i in range(4):
        em.out("s_waitcnt vmcnt(57)")
        q_step(em, i, False, spread(kpre_pieces(em, cfg, 6*i, 6*i+6), 1, 26))
        em.out("s_waitcnt lgkmcnt(0)"); em.dsq = []; em.ds_pend = {}
        em.barrier()
    em.salu(f"s_add_u32 {sKsrc}, {sKsrc}, {32*384}")
    em.salu(f"s_add_u32 {sKlds}, {sKlds}, {KCH}")
    em.salu(f"s_sub_u32 {sCnt}, {sCnt}, 1")
    em.salu(f"s_cmp_lg_u32 {sCnt}, 0")
    em.salu("s_cbranch_scc1 K1_LOOP_K")
    em.reset_state()
    em.label("K1_NL")
    for i in range(4):
        q_step(em, i, False, [])
        if i == 0:
            em.salu(f"s_cmp_eq_u32 {sW}, 3")
            em.salu("s_cbranch_scc1 K1_NL_SKIP")
            em.out("s_waitcnt vmcnt(0)")
            em.label("K1_NL_SKIP")
        em.out("s_waitcnt lgkmcnt(0)"); em.dsq = []; em.ds_pend = {}
        em.barrier()
    em.salu(f"s_sub_u32 {sNL}, {sNL}, 1")
    em.salu(f"s_cmp_lg_u32 {sNL}, 0")
    em.salu("s_cbranch_scc1 K1_NL")

class Chunk:
    def __init__(self, name, size, landed, release):
        self.name, self.size, self.landed, self.release = name, size, landed, release
        self.addr = None; self.issue = None

def plan_chunks():
    ch = []
    for j in range(8): ch.append(Chunk(f"K{j}", KCH, j-1, j+1))
    for v in range(12): ch.append(Chunk(f"V{v}", VCH, 9+v-1, 9+v+1))
    fixed = {"K0": 0, "K1": KCH, "K2": 2*KCH, "K3": 132*KB}
    for c in ch:
        if c.name in fixed: c.addr = fixed[c.name]; c.issue = -2
    reserved = [(SMALL, 4*KB, -10, 1000), (OX, 40*KB, 9+4, 1000)]
    unit = 4*KB
    live = [c for c in ch if c.addr is not None]
    pending = [c for c in ch if c.addr is None]
    for T in range(0, 22):
        while pending:
            c = pending[0]
            found = None
            for a in range(0, LDS_TOTAL - c.size + 1, unit):
                ok = True
                for o in live:
                    if o.release > T and a < o.addr + o.size and o.addr < a + c.size: ok = False; break
                if ok:
                    for (ra, rs, t0, t1) in reserved:
                        if a < ra + rs and ra < a + c.size and t0 < c.release and t1 > T: ok = False; break
                if ok: found = a; break
            if found is None: break
            c.addr = found; c.issue = T; live.append(c); pending.pop(0)
    assert not pending
    for c in ch: assert c.issue <= c.landed - 1 or c.issue < 0, (c.name, c.issue, c.landed)
    return {c.name: c for c in ch}

def k_pieces(em, cfg, c, j):
    out = []
    for kh in range(2):
        for i in range(3):
            def a(kh=kh, i=i):
                em.salu(f"s_add_u32 m0, {sLK}, {c.addr + kh*12288 + i*1024}")
                em.salu(f"s_add_u32 {sT1}, {sLK}, {(256*kh + 32*j)*384}")
            out.append(a)
            out.append(lambda i=i: em.dma(vKD[i], sK, sT1, tag=c.name, flags=cfg.kv_flags))
    return out
def v_pieces(em, cfg, c, v):
    out = []
    pn, qd = v // 4, v % 4
    for i in range(4):
        def a(i=i):
            em.salu(f"s_add_u32 m0, {sLV}, {c.addr + i*1024}")
            em.salu(f"s_add_u32 {sT1}, {sVsrc}, {(64*qd + 8*i)*384 + pn*128}")
        out.append(a)
        out.append(lambda: em.dma(vVD, sV, sT1, tag=c.name, flags=cfg.kv_flags))
    return out
def chunk_pieces(em, cfg, plan, T):
    out = []
    for c in plan.values():
        if c.issue == T:
            idx = int(c.name[1:])
            out += k_pieces(em, cfg, c, idx) if c.name[0] == "K" else v_pieces(em, cfg, c, idx)
    return out
def wait_landed(em, plan, T, lgkm=None):
    did = False
    for c in plan.values():
        if c.landed == T:
            n0 = len(em.lines); em.wait_tag(c.name, extra_lgkm=lgkm); did = did or len(em.lines) > n0
    if not did and lgkm is not None: em.wait(lgkm=lgkm)

def dump_regs(em, cfg, name, regs_list, slot_base):
    pass

def q_exchange(em, cfg, plan):
    em.reset_state()
    em.nop(8)
    c3 = plan["K3"]
    kp = k_pieces(em, cfg, c3, 3)
    tmp = [V(QAF + 2*i, 2) for i in range(12)]
    n = 0; ki = 0
    for dt in range(6):
        for qt in range(5):
            acc = qacc(dt, qt); t = tmp[n % 12]
            em.valu("v_cvt_pk_bf16_f32", t.sub(0), acc.sub(0), acc.sub(1))
            em.valu("v_cvt_pk_bf16_f32", t.sub(1), acc.sub(2), acc.sub(3))
            em.ds_write("ds_write_b64", vQW, t, ((dt >> 1)*10 + qt)*1024 + (dt & 1)*512)
            if ki < len(kp) and n % 2 == 0:
                kp[ki](); ki += 1
            n += 1
    while ki < len(kp): kp[ki](); ki += 1
    em.wait(lgkm=0)
    em.barrier()
    for s in range(6):
        for qt in range(5):
            em.ds_read("ds_read_b128", Qf(s, qt), vQR, (s*10 + qt)*1024)
    em.wait(vm=len([x for x in em.vmq]), lgkm=0)
    em.barrier()

def k_base(em, st, addr):
    em.valu("v_add_u32", vKc[st][0], addr, vKb[0])
    em.valu("v_add_u32", vKc[st][1], addr, vKb[1])
def k_read(em, n_glob):
    j, r = divmod(n_glob, 12); ktp, s = divmod(r, 6)
    em.ds_read("ds_read_b128", Kf(n_glob), vKc[j & 1][s & 1], ktp*6144 + (s >> 1)*128)

def max_ops(em, kt):
    out = []
    tmp = [vT[0], vT[1], vT[2], vT[3]]
    for qt in range(5):
        s = Sreg(kt, qt)
        if s.k == "a":
            def rd(s=s):
                for e in range(4): em.valu("v_accvgpr_read_b32", tmp[e], s.sub(e))
            out.append(rd)
            src = tmp
        else:
            src = [s.sub(e) for e in range(4)]
        if kt == 0:
            out.append(lambda qt=qt, src=src: em.valu("v_max3_f32", vM[qt], src[0], src[1], src[2]))
            out.append(lambda qt=qt, src=src: em.valu("v_max_f32", vM[qt], vM[qt], src[3]))
        else:
            out.append(lambda qt=qt, src=src: em.valu("v_max3_f32", vM[qt], vM[qt], src[0], src[1]))
            out.append(lambda qt=qt, src=src: em.valu("v_max3_f32", vM[qt], vM[qt], src[2], src[3]))
    return out

def s_phase(em, cfg, plan):
    k_base(em, 0, plan["K0"].addr)
    for n in range(3): k_read(em, n)
    for j in range(8):
        T = j
        dma = chunk_pieces(em, cfg, plan, T)
        for ktp in range(2):
            kt = 2*j + ktp
            mf = []; fill = []
            for s in range(6):
                n = 12*j + 6*ktp + s
                for qt in range(5):
                    mf.append(lambda s=s, qt=qt, n=n, kt=kt: em.mfma(Sreg(kt,qt), Kf(n), Qf(s,qt), Sreg(kt,qt) if s else 0))
                nn = n + 3
                if nn < 96:
                    if nn % 12 == 0:
                        fill.append((5*s + 0, lambda nn=nn: k_base(em, (nn//12) & 1, plan[f"K{nn//12}"].addr)))
                    fill.append((5*s + 1, lambda nn=nn: k_read(em, nn)))
            if kt > 0: fill += spread(max_ops(em, kt-1), 3, 29)
            half = (len(dma) + 1)//2; half += half & 1
            part = dma[:half] if ktp == 0 else dma[half:]
            fill += spread(part, 1, 28)
            fill.sort(key=lambda x: x[0])
            interleave(em, mf, fill)
        wait_landed(em, plan, T+1)
        em.barrier()
    for f in max_ops(em, 15): f()

def softmax(em, cfg, plan):
    T = 8
    dma = chunk_pieces(em, cfg, plan, T)
    t0, t1 = vT[0], vT[1]
    for qt in range(5):
        em.valu("v_mov_b32", t0, vM[qt])
        em.valu("v_permlane16_swap_b32", vM[qt], t0)
        em.valu("v_max_f32", vM[qt], vM[qt], t0)
        em.valu("v_mov_b32", t0, vM[qt])
        em.valu("v_permlane32_swap_b32", vM[qt], t0)
        em.valu("v_max_f32", vM[qt], vM[qt], t0)
    em.valu("v_and_b32", t0, 15, vL)
    em.valu("v_lshlrev_b32", t0, 2, t0)
    em.salu(f"s_mul_i32 {sT1}, {sW}, 320")
    em.salu(f"s_add_u32 {sT1}, {sT1}, {MX}")
    em.valu("v_add_u32", vMW, sT1, t0)
    em.salu(f"s_xor_b32 {sT1}, {sW}, 2")
    em.salu(f"s_mul_i32 {sT1}, {sT1}, 320")
    em.salu(f"s_add_u32 {sT1}, {sT1}, {MX}")
    em.valu("v_add_u32", vMR, sT1, t0)
    for qt in range(5): em.ds_write("ds_write_b32", vMW, vM[qt], qt*64)
    em.wait(lgkm=0)
    em.barrier()
    tm = [vT[2], vT[3], vT[4], vT[5], vT[6]]
    for qt in range(5): em.ds_read("ds_read_b32", tm[qt], vMR, qt*64)
    for f in dma: f()
    for qt in range(5):
        em.valu("v_max_f32", vM[qt], vM[qt], tm[qt])
        em.valu("v_mul_f32", vM[qt], sC, vM[qt])
    def do_block(src8, dst4):
        for e in range(8): em.valu("v_fma_f32", src8[e], src8[e], sC, ("-" + str(mq), mq))
        for e in range(8): em.valu("v_exp_f32", src8[e], src8[e])
        for e in range(4): em.valu("v_cvt_pk_bf16_f32", dst4.sub(e), src8[2*e], src8[2*e+1])
    for j in range(3, 8):
        for qt in range(5):
            mq = vM[qt]
            blk = V(48 + ((j-3)*5+qt)*8, 8)
            do_block([blk.sub(e) for e in range(8)], Preg(j, qt))
    tmpb = [15, 16, 17, 18, 19, 20]
    k = 0
    for j in range(3):
        for qt in range(5):
            mq = vM[qt]
            h0, h1 = hole(tmpb[k % 6]), hole(tmpb[(k+1) % 6]); k += 2
            src = [h0.sub(e) for e in range(4)] + [h1.sub(e) for e in range(4)]
            ab = A(136 + (j*5+qt)*8, 8)
            for e in range(8): em.valu("v_accvgpr_read_b32", src[e], ab.sub(e))
            do_block(src, Preg(j, qt))
    for e in range(4): em.valu("v_mov_b32", vOnes.sub(e), 0x3f803f80)

def v_base(em, st, addr):
    em.valu("v_add_u32", vVc[st][0], addr, vVb)
    for a in range(1, 4): em.valu("v_xor_b32", vVc[st][a], a << 5, vVc[st][0])
def v_read(em, n_glob):
    v, r = divmod(n_glob, 8); jj, a = divmod(r, 4)
    for hf in range(2):
        em.ds_read("ds_read_b64_tr_b16", Vf(n_glob).sub(2*hf, 2), vVc[v & 1][a], jj*4096 + hf*2048)

def pv_addr_setup(em):
    t0 = vT[0]
    em.valu("v_lshlrev_b32", t0, 4, vL)
    em.salu(f"s_mul_i32 {sT1}, {sW}, 10240"); em.salu(f"s_add_u32 {sT1}, {sT1}, {OX}")
    em.valu("v_add_u32", vOW, sT1, t0)
    em.salu(f"s_xor_b32 {sT1}, {sW}, 2"); em.salu(f"s_mul_i32 {sT1}, {sT1}, 10240"); em.salu(f"s_add_u32 {sT1}, {sT1}, {OX}")
    em.valu("v_add_u32", vOR, sT1, t0)
    em.salu(f"s_lshr_b32 {sT1}, {sW}, 1"); em.salu(f"s_mul_i32 {sT1}, {sT1}, 10240")
    em.salu(f"s_and_b32 {sT2}, {sW}, 1"); em.salu(f"s_mul_i32 {sT2}, {sT2}, 5120")
    em.salu(f"s_add_u32 {sT1}, {sT1}, {sT2}"); em.salu(f"s_add_u32 {sT1}, {sT1}, {sOoff}")
    em.valu("v_add_u32", vOS, sT1, t0)
    em.valu("v_add_u32", vLW, LX - MX, vMW)
    em.valu("v_add_u32", vLR, LX - MX, vMR)

def epi_send(em, pn):
    st = pn & 1; out = []
    for a in (2, 3):
        for qt in range(5):
            out.append(lambda a=a, qt=qt: em.ds_write("ds_write_b128", vOW, Oacc(st, a, qt), ((a-2)*5+qt)*1024))
    if pn == 0:
        for qt in range(5):
            def f(qt=qt):
                em.valu("v_accvgpr_read_b32", vR[qt], Lacc(qt).sub(0))
                em.ds_write("ds_write_b32", vLW, vR[qt], qt*64)
            out.append(f)
    return out
def epi_recv(em, cfg, pn):
    st = pn & 1; out = []
    T = lambda a, qt: hole(15 + a*5 + qt)
    if pn == 0:
        tl = [vT[0], vT[1], vT[2], vT[3], vT[4]]
        for qt in range(5): out.append(lambda qt=qt: em.ds_read("ds_read_b32", tl[qt], vLR, qt*64))
    for qt in range(5):
        for a in range(2):
            out.append(lambda a=a, qt=qt: em.ds_read("ds_read_b128", T(a, qt), vOR, (a*5+qt)*1024))
    if pn == 0:
        for qt in range(5):
            out.append(lambda qt=qt: em.valu("v_add_f32", vR[qt], vR[qt], tl[qt]))
            out.append(lambda qt=qt: em.valu("v_rcp_f32", vR[qt], vR[qt]))
    tt = [vT[5], vT[6]]
    for qt in range(5):
        for a in range(2):
            for e in range(4):
                t = tt[e & 1]
                out.append(lambda a=a, qt=qt, e=e, t=t: em.valu("v_accvgpr_read_b32", t, Oacc(st, a, qt).sub(e)))
                out.append(lambda a=a, qt=qt, e=e, t=t: em.valu("v_add_f32", T(a,qt).sub(e), T(a,qt).sub(e), t))
                out.append(lambda a=a, qt=qt, e=e: em.valu("v_mul_f32", T(a,qt).sub(e), T(a,qt).sub(e), vR[qt]))
        d = T(0, qt); s1 = T(1, qt)
        out.append(lambda d=d: em.valu("v_cvt_pk_bf16_f32", d.sub(0), d.sub(0), d.sub(1)))
        out.append(lambda d=d: em.valu("v_cvt_pk_bf16_f32", d.sub(1), d.sub(2), d.sub(3)))
        out.append(lambda d=d, s1=s1: em.valu("v_cvt_pk_bf16_f32", d.sub(2), s1.sub(0), s1.sub(1)))
        out.append(lambda d=d, s1=s1: em.valu("v_cvt_pk_bf16_f32", d.sub(3), s1.sub(2), s1.sub(3)))
        out.append(lambda d=d, qt=qt: em.buf_store("buffer_store_dwordx4", d, vOS, sO, sT2, offset=0) if False else store_o(em, cfg, d, pn, qt))
    return out
def store_o(em, cfg, d, pn, qt):
    em.salu(f"s_mov_b32 {sT2}, {pn*20480 + qt*1024}")
    em.buf_store("buffer_store_dwordx4", d, vOS, sO, sT2, flags=cfg.o_flags, tag="O")

def pv_phase(em, cfg, plan):
    pv_addr_setup(em)
    wait_landed(em, plan, 9)
    em.barrier()
    v_base(em, 0, plan["V0"].addr)
    for n in range(3): v_read(em, n)
    pend_send = []; pend_recv = []
    for v in range(12):
        pn, qd = divmod(v, 4); st = pn & 1
        T = 9 + v
        dma = chunk_pieces(em, cfg, plan, T)
        mf = []; fill = []
        for jj in range(2):
            j = 2*qd + jj
            for a in range(4):
                n = 8*v + 4*jj + a
                base = len(mf)
                for qt in range(5):
                    first = (qd == 0 and jj == 0)
                    mf.append(lambda a=a, qt=qt, n=n, j=j, first=first: em.mfma(Oacc(st,a,qt), Vf(n), Preg(j,qt), 0 if first else Oacc(st,a,qt)))
                nn = n + 3
                if nn < 96:
                    if nn % 8 == 0:
                        fill.append((base, lambda nn=nn: v_base(em, (nn//8) & 1, plan[f"V{nn//8}"].addr)))
                    fill.append((base + 1, lambda nn=nn: v_read(em, nn)))
            if pn == 0:
                for qt in range(5):
                    mf.append(lambda qt=qt, j=j: em.mfma(Lacc(qt), vOnes, Preg(j,qt), 0 if j == 0 else Lacc(qt)))
        L = len(mf)
        fill += spread(dma, 1, L-2)
        if qd == 0 and pn > 0:
            fill += spread(epi_send(em, pn-1), 2, L-4)
        if qd == 1 and pn > 0:
            r = epi_recv(em, cfg, pn-1); h = len(r)//2
            fill += spread(r[:h], 0, L-1); pend_recv = r[h:]
        if qd == 2 and pn > 0:
            fill += spread(pend_recv, 0, L-1); pend_recv = []
        fill.sort(key=lambda x: x[0])
        interleave(em, mf, fill)
        if v < 11:
            lg = 0 if (qd == 0 and pn > 0) else None
            wait_landed(em, plan, T+1, lgkm=lg)
            em.barrier()
    for f in epi_send(em, 2): f()
    em.wait(lgkm=0)
    em.barrier()
    for f in epi_recv(em, cfg, 2): f()

def gen_k1(cfg):
    em = Em()
    em.label("attn_kernel")
    u, g = prologue(em, cfg)
    q_phase(em, cfg, u, g)
    plan = plan_chunks()
    q_exchange(em, cfg, plan)
    s_phase(em, cfg, plan)
    softmax(em, cfg, plan)
    pv_phase(em, cfg, plan)
    em.label("K1_END")
    em.out("s_endpgm")
    return em, plan

if __name__ == "__main__":
    cfg = Cfg(); cfg.o_flags = ""
    em, plan = gen_k1(cfg)
    for c in plan.values(): print(c.name, c.addr//1024, c.issue, c.landed, c.release)
    print(em.stats)
    print(len(em.lines))
```

```python
from emit import *
from k1 import srd, srd_off, WS_O, WS_PART, KB

NSLOT = 8
SLOT = 20*KB
sO, sWO, sP = S(8,4), S(12,4), S(16,4)
sW, sB, sJ, sCc = S(28), S(29), S(30), S(31)
sT0, sT1, sT2, sT3 = S(46), S(47), S(48), S(49)
sIdx, sSrc, sLds, sCnt = S(32), S(33), S(34), S(35)
sStep = S(50)
sPoff = S(51)
sIsO = S(52)
vL = V(0)
vT = [V(i) for i in range(1, 8)]
vA = [V(8+i) for i in range(5)]
vB = V(13)
vD = [V(16+i) for i in range(5)]
vPS = V(22)
ACC = 48; AF = 152; BF = 192
def acc(nt, qt): return V(ACC + (nt*5+qt)*4, 4)
def fA(buf, nt): return V(AF + buf*20 + nt*4, 4)
def fB(buf, qt): return V(BF + buf*20 + qt*4, 4)

def reads(em, buf, slot):
    out = []
    base = (slot % 3) * SLOT; grp = slot // 3
    B = lambda qt: em.ds_read("ds_read_b128", fB(buf, qt), vBg[grp], base + qt*1024)
    def Ar(nt, hf): em.ds_read("ds_read_b64_tr_b16", fA(buf, nt).sub(2*hf, 2), vAg[grp][nt], base + 10*KB + hf*16*320)
    seq = [("B",0),("A",0,0),("A",0,1),("B",1),("B",2),("A",1,0),("A",1,1),("B",3),("B",4),("A",2,0),("A",2,1),("A",3,0),("A",3,1),("A",4,0),("A",4,1)]
    for it in seq:
        if it[0] == "B": out.append(lambda qt=it[1]: B(qt))
        else: out.append(lambda nt=it[1], hf=it[2]: Ar(nt, hf))
    return out
vAg = [[V(24+i) for i in range(5)], [V(29+i) for i in range(5)], [V(34+i) for i in range(5)]]
vBg = [V(39), V(40), V(41)]

def pieces(em, cfg, slot):
    out = []
    for p in range(5):
        out.append(lambda p=p: em.salu(f"s_add_u32 m0, {sLds}, {slot*SLOT + p*1024}"))
        out.append(lambda p=p: em.dma(vD[p], S(20,4), sSrc, flags=cfg.k2_flags))
    def adv():
        em.salu(f"s_add_u32 {sIdx}, {sIdx}, 1")
        em.salu(f"s_cmp_eq_u32 {sIdx}, 24")
        em.salu(f"s_cselect_b32 {sIdx}, 0, {sIdx}")
        em.salu(f"s_mul_i32 {sSrc}, {sIdx}, {sStep}")
    out.append(adv)
    return out

def step(em, cfg, i, with_dma):
    cur, nxt = i & 1, (i+1) & 1
    mf = []
    for nt in range(5):
        for qt in range(5):
            mf.append(lambda nt=nt, qt=qt: em.mfma(acc(nt,qt), fA(cur,nt), fB(cur,qt), acc(nt,qt)))
    fill = spread(reads(em, nxt, (i+1) % NSLOT), 0, 17)
    if with_dma: fill += spread(pieces(em, cfg, i), 1, 22)
    fill.sort(key=lambda x: x[0])
    interleave(em, mf, fill)

def gen_k2(cfg):
    em = Em()
    em.label("oproj_kernel")
    em.salu("s_cmp_ge_u32 s2, 256")
    em.salu("s_cbranch_scc1 K2_END")
    em.out("s_load_dwordx2 s[36:37], s[0:1], 32")
    em.out("s_load_dwordx2 s[38:39], s[0:1], 56")
    em.valu("v_lshrrev_b32", vT[0], 6, V(0))
    em.valu("v_and_b32", vL, 63, V(0))
    em.valu("v_readfirstlane_b32", sW, vT[0])
    em.salu(f"s_and_b32 {sJ}, s2, 7")
    em.salu("s_lshr_b32 s3, s2, 3")
    em.salu(f"s_and_b32 {sCc}, s3, 3")
    em.salu(f"s_lshr_b32 {sB}, s3, 2")
    em.salu(f"s_mul_i32 {sT0}, {sB}, 3")
    em.salu(f"s_mul_i32 {sT1}, {sCc}, 7")
    em.salu(f"s_add_u32 {sT0}, {sT0}, {sT1}")
    em.salu(f"s_cmp_ge_u32 {sT0}, 24")
    em.salu(f"s_cselect_b32 {sT1}, 24, 0")
    em.salu(f"s_sub_u32 {sIdx}, {sT0}, {sT1}")
    u, g = vT[1], vT[2]
    em.valu("v_and_b32", u, 15, vL)
    em.valu("v_lshrrev_b32", g, 4, vL)
    em.out("s_waitcnt lgkmcnt(0)")
    em.salu(f"s_cmp_ge_u32 {sW}, 2")
    em.salu("s_cbranch_scc1 K2_ROLE_O")
    em.salu(f"s_mul_i32 {sT0}, {sJ}, {768*1280}")
    em.salu(f"s_mul_i32 {sT1}, {sCc}, 320")
    em.salu(f"s_add_u32 {sT0}, {sT0}, {sT1}")
    em.salu(f"s_sub_u32 {sT1}, 7864320, {sT0}")
    srd_off(em, S(20,4), "s36", "s37", sT0, sT1)
    em.salu(f"s_mov_b32 {sStep}, {32*1280}")
    em.salu(f"s_mul_i32 {sLds}, {sW}, 5120")
    em.salu(f"s_add_u32 {sLds}, {sLds}, {10*KB}")
    C, row, pos, t, f = vT[0], vT[3], vT[4], vT[5], vT[6]
    em.salu(f"s_mul_i32 {sT0}, {sW}, 320")
    for p in range(5):
        em.valu("v_add_u32", C, 64*p, vL)
        em.valu("v_add_u32", C, sT0, C)
        em.valu("v_mul_u32_u24", row, 3277, C)
        em.valu("v_lshrrev_b32", row, 16, row)
        em.valu("v_mul_u32_u24", t, 20, row)
        em.valu("v_sub_u32", pos, C, t)
        em.valu("v_bfe_u32", f, row, 2, 1)
        em.valu("v_lshrrev_b32", t, 1, pos)
        em.valu("v_xor_b32", t, t, f)
        em.valu("v_and_b32", pos, 1, pos)
        em.valu("v_lshlrev_b32", pos, 4, pos)
        em.valu("v_lshl_or_b32", t, t, 5, pos)
        em.valu("v_mul_u32_u24", row, 1280, row)
        em.valu("v_add_u32", vD[p], row, t)
    em.salu("s_branch K2_ROLE_DONE")
    em.label("K2_ROLE_O")
    em.salu(f"s_lshl_b32 {sT0}, {sB}, 5")
    em.salu(f"s_lshl_b32 {sT1}, {sJ}, 2")
    em.salu(f"s_add_u32 {sT0}, {sT0}, {sT1}")
    em.salu(f"s_mul_i32 {sT0}, {sT0}, 61440")
    srd_off(em, S(20,4), "s38", "s39", sT0, 4*61440)
    em.salu(f"s_mov_b32 {sStep}, 10240")
    em.salu(f"s_sub_u32 {sT0}, {sW}, 2")
    em.salu(f"s_mul_i32 {sLds}, {sT0}, 5120")
    em.valu("v_lshlrev_b32", vT[0], 4, vL)
    em.valu("v_add_u32", vT[0], sLds, vT[0])
    for p in range(5): em.valu("v_add_u32", vD[p], p*1024, vT[0])
    em.label("K2_ROLE_DONE")
    em.reset_state()
    em.salu(f"s_mul_i32 {sSrc}, {sIdx}, {sStep}")
    for s in range(NSLOT):
        for f in pieces(em, cfg, s): f()
    em.salu(f"s_and_b32 {sT0}, {sW}, 1")
    em.salu(f"s_lshr_b32 {sT1}, {sW}, 1")
    t0, t1, t2, f = vT[0], vT[3], vT[4], vT[5]
    em.salu(f"s_mul_i32 {sT2}, {sT0}, 5120")
    em.valu("v_lshlrev_b32", t0, 4, vL)
    em.valu("v_add_u32", vBg[0], sT2, t0)
    em.valu("v_add_u32", vBg[1], 3*SLOT, vBg[0])
    em.valu("v_add_u32", vBg[2], 6*SLOT, vBg[0])
    em.valu("v_lshrrev_b32", t0, 2, u)
    em.valu("v_lshl_add_u32", t0, g, 2, t0)
    em.valu("v_mul_u32_u24", t0, 320, t0)
    em.valu("v_and_b32", t1, 3, u)
    em.valu("v_lshl_add_u32", t0, t1, 3, t0)
    em.valu("v_and_b32", f, 1, g)
    em.salu(f"s_mul_i32 {sT2}, {sT1}, 5")
    for nt in range(5):
        em.salu(f"s_add_u32 {sT3}, {sT2}, {nt}")
        em.valu("v_xor_b32", t1, sT3, f)
        em.valu("v_lshl_add_u32", vAg[0][nt], t1, 5, t0)
        em.valu("v_add_u32", vAg[1][nt], 3*SLOT, vAg[0][nt])
        em.valu("v_add_u32", vAg[2][nt], 6*SLOT, vAg[0][nt])
    em.salu(f"s_lshl_b32 {sT2}, {sB}, 2"); em.salu(f"s_add_u32 {sT2}, {sT2}, {sCc}")
    em.salu(f"s_lshl_b32 {sT2}, {sT2}, 2"); em.salu(f"s_add_u32 {sT2}, {sT2}, {sW}")
    em.salu(f"s_mul_i32 {sT2}, {sT2}, 200"); em.salu(f"s_add_u32 {sT2}, {sT2}, {sJ}")
    em.salu(f"s_lshl_b32 {sT2}, {sT2}, 10")
    em.salu(f"s_add_u32 {sT2}, {sT2}, {WS_PART}")
    em.valu("v_lshlrev_b32", t0, 4, vL)
    em.valu("v_add_u32", vPS, sT2, t0)
    srd(em, sP, "s38", "s39", 0x10000000)
    for nt in range(5):
        for qt in range(5):
            for e in range(4): em.valu("v_mov_b32", acc(nt,qt).sub(e), 0)
    em.out(f"s_waitcnt vmcnt({5*(NSLOT-1)})")
    em.barrier()
    for f in reads(em, 0, 0): f()
    em.out(f"s_waitcnt vmcnt({5*(NSLOT-2)}) lgkmcnt(0)")
    em.barrier()
    em.salu(f"s_mov_b32 {sCnt}, 2")
    em.reset_state()
    em.label("K2_LOOP")
    for i in range(NSLOT):
        step(em, cfg, i, True)
        em.out(f"s_waitcnt vmcnt({5*(NSLOT-2)}) lgkmcnt(0)"); em.dsq = []; em.ds_pend = {}
        em.barrier()
    em.salu(f"s_sub_u32 {sCnt}, {sCnt}, 1")
    em.salu(f"s_cmp_lg_u32 {sCnt}, 0")
    em.salu("s_cbranch_scc1 K2_LOOP")
    em.reset_state()
    for i in range(NSLOT):
        step(em, cfg, i, False)
        if i < NSLOT-1:
            n = max(0, 5*(NSLOT-3-i))
            em.out(f"s_waitcnt vmcnt({n}) lgkmcnt(0)"); em.dsq = []; em.ds_pend = {}
            em.barrier()
    for nt in range(5):
        for qt in range(5):
            em.salu(f"s_mov_b32 {sT0}, {(nt*5+qt)*8*1024}")
            em.buf_store("buffer_store_dwordx4", acc(nt,qt), vPS, sP, sT0, flags=cfg.p_flags)
    em.label("K2_END")
    em.out("s_endpgm")
    return em

def gen_k3(cfg):
    em = Em()
    em.label("reduce_kernel")
    em.salu("s_cmp_ge_u32 s2, 800")
    em.salu("s_cbranch_scc1 K3_END")
    em.out("s_load_dwordx2 s[36:37], s[0:1], 40")
    em.out("s_load_dwordx2 s[38:39], s[0:1], 56")
    em.valu("v_lshrrev_b32", V(1), 6, V(0))
    em.valu("v_and_b32", V(0), 63, V(0))
    em.valu("v_readfirstlane_b32", S(28), V(1))
    em.salu("s_lshl_b32 s3, s2, 2")
    em.salu("s_add_u32 s3, s3, s28")
    em.salu("s_lshl_b32 s29, s3, 13")
    em.salu(f"s_add_u32 s29, s29, {WS_PART}")
    em.valu("v_lshlrev_b32", V(2), 4, V(0))
    em.salu("s_mul_i32 s30, s3, 5243"); em.salu("s_lshr_b32 s30, s30, 17")
    em.salu("s_mul_i32 s31, s30, 25"); em.salu("s_sub_u32 s31, s3, s31")
    em.salu("s_mul_i32 s32, s31, 52"); em.salu("s_lshr_b32 s32, s32, 8")
    em.salu("s_mul_i32 s33, s32, 5"); em.salu("s_sub_u32 s33, s31, s33")
    em.salu("s_and_b32 s34, s30, 1")
    em.salu("s_bfe_u32 s35, s30, 0x10001")
    em.salu("s_bfe_u32 s40, s30, 0x20002")
    em.salu("s_lshr_b32 s41, s30, 4")
    em.salu("s_mul_i32 s41, s41, 160"); em.salu("s_mul_i32 s34, s34, 80"); em.salu("s_add_u32 s41, s41, s34")
    em.salu("s_lshl_b32 s33, s33, 4"); em.salu("s_add_u32 s41, s41, s33"); em.salu("s_mul_i32 s41, s41, 1280")
    em.salu("s_mul_i32 s40, s40, 160"); em.salu("s_mul_i32 s35, s35, 80"); em.salu("s_add_u32 s40, s40, s35")
    em.salu("s_lshl_b32 s32, s32, 4"); em.salu("s_add_u32 s40, s40, s32"); em.salu("s_lshl_b32 s40, s40, 1")
    em.salu("s_add_u32 s41, s41, s40")
    em.valu("v_and_b32", V(3), 15, V(0))
    em.valu("v_mul_u32_u24", V(3), 1280, V(3))
    em.valu("v_lshrrev_b32", V(4), 4, V(0))
    em.valu("v_lshl_add_u32", V(3), V(4), 3, V(3))
    em.out("s_waitcnt lgkmcnt(0)")
    srd(em, S(8,4), "s38", "s39", 0x10000000)
    srd(em, S(12,4), "s36", "s37", 1638400)
    for j in range(8):
        em.buf_load("buffer_load_dwordx4", V(8+4*j, 4), V(2), S(8,4), "s29", offset=0 if j < 4 else 0) if False else None
    for j in range(8):
        if j % 4 == 0 and j: em.salu("s_add_u32 s29, s29, 4096")
        em.buf_load("buffer_load_dwordx4", V(8+4*j, 4), V(2), S(8,4), S(29), offset=(j % 4)*1024, flags=cfg.k3_flags)
    for j in range(1, 8):
        for e in range(4): em.valu("v_add_f32", V(8+e), V(8+e), V(8+4*j+e))
    em.valu("v_cvt_pk_bf16_f32", V(8), V(8), V(9))
    em.valu("v_cvt_pk_bf16_f32", V(9), V(10), V(11))
    em.buf_store("buffer_store_dwordx2", V(8,2), V(3), S(12,4), S(41))
    em.label("K3_END")
    em.out("s_endpgm")
    return em
```

```python
import sys, os
sys.path.insert(0, os.path.dirname(os.path.abspath(__file__)))
from k1 import gen_k1, Cfg
from k23 import gen_k2, gen_k3

HEADER = """; Kernarg layout (64 bytes): x, k_cache, v_cache, wq, wo, out, debug, ws
; @launch kernel=attn_kernel grid=(256,1,1) block=(256,1,1) lds=163840
; @launch kernel=oproj_kernel grid=(256,1,1) block=(256,1,1) lds=163840
; @launch kernel=reduce_kernel grid=(800,1,1) block=(256,1,1) lds=0
.amdgcn_target "amdgcn-amd-amdhsa--gfx950"
.text
"""
def kd(name, vgpr, acc):
    return f""".amdhsa_kernel {name}
  .amdhsa_next_free_vgpr {vgpr}
  .amdhsa_next_free_sgpr 102
  .amdhsa_accum_offset {acc}
  .amdhsa_group_segment_fixed_size 0
  .amdhsa_kernarg_size 64
  .amdhsa_user_sgpr_count 2
  .amdhsa_user_sgpr_kernarg_segment_ptr 1
  .amdhsa_system_sgpr_workgroup_id_x 1
  .amdhsa_float_denorm_mode_32 3
.end_amdhsa_kernel
"""
def build(cfg):
    parts = [HEADER]
    em1, plan = gen_k1(cfg); em2 = gen_k2(cfg); em3 = gen_k3(cfg)
    for name, em in (("attn_kernel", em1), ("oproj_kernel", em2), ("reduce_kernel", em3)):
        parts.append(f".globl {name}\n.p2align 8\n.type {name},@function\n")
        parts.append(em.text())
    parts.append('.section .rodata,"a"\n')
    for name, vg, ac in (("attn_kernel", 512, 256), ("oproj_kernel", 256, 256), ("reduce_kernel", 48, 48)):
        parts.append(".p2align 6\n" + kd(name, vg, ac))
    return "".join(parts)

def default_cfg():
    cfg = Cfg()
    cfg.o_flags = ""; cfg.k2_flags = ""; cfg.p_flags = ""; cfg.k3_flags = ""
    return cfg

if __name__ == "__main__":
    cfg = default_cfg()
    out = sys.argv[1] if len(sys.argv) > 1 else "standalone__mha_block_cached__near_ridge.s"
    for kv in sys.argv[2:]:
        k, v = kv.split("=", 1); setattr(cfg, k, v)
    open(out, "w").write(build(cfg))
    print("wrote", out, os.path.getsize(out))
```

```python
from emit import *
import math

KB = 1024
XR = 72*KB;  XSLOT = 20*KB
WR = 112*KB; WSLOT = 12*KB
QX = 72*KB
SMALL = 156*KB
MX = SMALL; LX = SMALL + 2*KB
OX = 116*KB
KCH = 24*KB; VCH = 16*KB
LDS_TOTAL = 160*KB

WS_O = 0
WS_PART = 16*1024*1024
WS_DBG = 64*1024*1024

SCALE_LOG2E = math.log2(math.e) / math.sqrt(192.0)
import struct
def f32bits(x): return struct.unpack("<I", struct.pack("<f", x))[0]

sX, sWQ, sK, sV, sO = S(8,4), S(12,4), S(16,4), S(20,4), S(24,4)
sW, sB, sH, sT0 = S(28), S(29), S(30), S(31)
sWqIdx, sWqOff, sXIdx, sXOff = S(32), S(33), S(34), S(35)
sT1, sT2, sT3 = S(46), S(47), S(48)
sC = S(49)
sLK, sLV, sVsrc, sLWQ = S(50), S(51), S(52), S(53)
sCnt, sNL = S(54), S(55)
sKsrc, sKlds = S(56), S(57)
sOoff = S(58)
sDbg = S(60,4)

vL = V(0)
vT = [V(i) for i in range(1,8)]
vA = [V(8+i) for i in range(6)]
vB = [V(14), V(15)]
vD = [V(16+i) for i in range(6)]
vQW, vQR = V(22), V(23)
vKb = [V(24), V(25)]
vKc = [[V(26), V(27)], [V(28), V(29)]]
vKD = [V(30), V(31), V(32)]
vVD = V(33)
vVb = V(34)
vVc = [[V(36+i) for i in range(4)], [V(40+i) for i in range(4)]]
vOnes = V(44,4)
vM = [V(248+i) for i in range(5)]
vMW, vMR = V(253), V(254)
QACC = 48; QAF = 168; QBF = 216
def qacc(dt, qt): return V(QACC + (dt*5+qt)*4, 4)
def qA(buf, dt): return V(QAF + buf*24 + dt*4, 4)
def qB(buf, qt): return V(QBF + buf*20 + qt*4, 4)
def Qf(s, qt): return A((s*5+qt)*4, 4)
def Kf(n): return A(120 + (n % 4)*4, 4)
def Sreg(kt, qt):
    j, tau = kt >> 1, kt & 1
    if j >= 3: return V(48 + ((j-3)*5+qt)*8 + 4*tau, 4)
    return A(136 + (j*5+qt)*8 + 4*tau, 4)
def hole(bk): return V(48 + bk*8 + 4, 4)
def Preg(j, qt):
    if j >= 3: return V(48 + ((j-3)*5+qt)*8, 4)
    return hole(j*5+qt)
def Oacc(st, a, qt): return A(st*80 + (a*5+qt)*4, 4)
def Lacc(qt): return A(160 + qt*4, 4)
def Vf(n): return A(180 + (n % 4)*4, 4)
vR = [V(8+i) for i in range(5)]
vOW, vOR, vOS, vLW, vLR = V(13), V(14), V(15), V(16), V(17)

class Cfg:
    kv_flags = "nt"
    w_flags = ""
    dump = None
    kpre_per_step = 6

NSTAMP = 32
def stamp(em, cfg, i):
    if not getattr(cfg, "stamps", None): return
    em.out("s_memrealtime s[64:65]")
    em.wait(lgkm=0)
    em.salu(f"s_mov_b32 s{66+i}, s64")
def stamp_flush(em, cfg, area, wave_sgpr, srd_reg, nwg_shift=2):
    if not getattr(cfg, "stamps", None): return
    em.out("s_waitcnt vmcnt(0) lgkmcnt(0)")
    em.salu(f"s_lshl_b32 s3, s2, 2"); em.salu(f"s_add_u32 s3, s3, {wave_sgpr}"); em.salu("s_lshl_b32 s3, s3, 7")
    em.salu(f"s_add_u32 s3, s3, {WS_DBG + area}")
    em.salu("s_mov_b64 exec, 1")
    em.valu("v_mov_b32", V(1), "s3")
    for i in range(0, NSTAMP, 2):
        em.valu("v_mov_b32", V(2), f"s{66+i}")
        em.valu("v_mov_b32", V(3), f"s{66+i+1}")
        em.out(f"buffer_store_dwordx2 v[2:3], v1, {srd_reg}, 0 offen offset:{4*i}")
        em.out("s_nop 1")
    em.out("s_waitcnt vmcnt(0)")

def mul_const(em, dst, src, c, stmp):
    if c < (1 << 24) and True:
        em.valu("v_mul_u32_u24", dst, c, src)
    else:
        em.salu(f"s_mov_b32 {stmp}, {c}")
        em.valu("v_mul_lo_u32", dst, src, stmp)

def div24(em, row, pos, C, tmp):
    em.valu("v_mul_u32_u24", row, 2731, C)
    em.valu("v_lshrrev_b32", row, 16, row)
    em.valu("v_mul_u32_u24", tmp, 24, row)
    em.valu("v_sub_u32", pos, C, tmp)

def srd(em, s, lo, hi, size):
    em.salu(f"s_mov_b32 {s.sub(0)}, {lo}")
    em.salu(f"s_mov_b32 {s.sub(1)}, {hi}")
    em.salu(f"s_mov_b32 {s.sub(2)}, {size}")
    em.salu(f"s_mov_b32 {s.sub(3)}, 0x20000")

def srd_off(em, s, lo, hi, off_s, size):
    em.salu(f"s_add_u32 {s.sub(0)}, {lo}, {off_s}")
    em.salu(f"s_addc_u32 {s.sub(1)}, {hi}, 0")
    em.salu(f"s_mov_b32 {s.sub(2)}, {size}")
    em.salu(f"s_mov_b32 {s.sub(3)}, 0x20000")

def prologue(em, cfg):
    em.salu("s_cmp_ge_u32 s2, 256")
    em.salu("s_cbranch_scc1 K1_END")
    if getattr(cfg, "stamps", None):
        for i in range(32): em.salu(f"s_mov_b32 s{66+i}, 0")
    stamp(em, cfg, 0)
    em.out("s_load_dwordx4 s[36:39], s[0:1], 0")
    em.out("s_load_dwordx4 s[40:43], s[0:1], 16")
    em.out("s_load_dwordx2 s[44:45], s[0:1], 56")
    if cfg.dump: em.out("s_load_dwordx2 s[4:5], s[0:1], 56")
    em.valu("v_lshrrev_b32", vT[0], 6, V(0))
    em.valu("v_and_b32", vL, 63, V(0))
    em.valu("v_readfirstlane_b32", sW, vT[0])
    em.salu("s_and_b32 s3, s2, 7")
    em.salu("s_lshr_b32 s4, s2, 3" if not cfg.dump else "s_lshr_b32 s6, s2, 3")
    slot = "s4" if not cfg.dump else "s6"
    em.salu(f"s_and_b32 {sT0}, {slot}, 3")
    em.salu(f"s_lshl_b32 s3, s3, 2")
    em.salu(f"s_add_u32 {sH}, s3, {sT0}")
    em.salu(f"s_lshr_b32 {sB}, {slot}, 2")
    em.salu(f"s_mul_i32 {sT1}, {sT0}, 3")
    em.salu(f"s_add_u32 {sT1}, {sT1}, {sB}")
    em.salu(f"s_cmp_ge_u32 {sT1}, 10")
    em.salu(f"s_cselect_b32 {sT2}, 10, 0")
    em.salu(f"s_sub_u32 {sXIdx}, {sT1}, {sT2}")
    em.salu(f"s_lshl_b32 {sWqIdx}, {sXIdx}, 1")
    em.salu(f"s_lshl_b32 {sXOff}, {sXIdx}, 7")
    em.salu(f"s_mul_i32 {sWqOff}, {sWqIdx}, 393216")
    em.salu(f"s_mov_b32 {sC}, {hex(f32bits(SCALE_LOG2E))}")
    u, g, t0, t1, t2, t3 = vT[1], vT[2], vT[3], vT[4], vT[5], vT[6]
    em.valu("v_and_b32", u, 15, vL)
    em.valu("v_lshrrev_b32", g, 4, vL)
    em.out("s_waitcnt lgkmcnt(0)")
    em.salu(f"s_mul_i32 {sT1}, {sB}, 204800")
    srd_off(em, sX, "s36", "s37", sT1, 204800)
    em.salu(f"s_mul_i32 {sT1}, {sH}, 384")
    em.salu(f"s_sub_u32 {sT2}, 7864320, {sT1}")
    srd_off(em, sWQ, "s42", "s43", sT1, sT2)
    em.salu(f"s_lshl_b32 {sT1}, {sB}, 5")
    em.salu(f"s_add_u32 {sT1}, {sT1}, {sH}")
    em.salu(f"s_mul_i32 {sOoff}, {sT1}, 61440")
    em.salu(f"s_mul_i32 {sT1}, {sT1}, 196608")
    srd_off(em, sK, "s38", "s39", sT1, 196608)
    srd_off(em, sV, "s40", "s41", sT1, 196608)
    srd(em, sO, "s44", "s45", 0x10000000)
    if cfg.dump: srd(em, sDbg, "s4", "s5", 0x10000000)
    return u, g

def role_branch(em):
    em.salu(f"s_cmp_eq_u32 {sW}, 2")
    em.salu("s_cbranch_scc1 K1_ROLE_X")
    em.salu(f"s_cmp_eq_u32 {sW}, 3")
    em.salu("s_cbranch_scc1 K1_ROLE_K")

def pat_wq(em):
    C, row, pos, t, f = vT[0], vT[3], vT[4], vT[5], vT[6]
    em.salu(f"s_lshl_b32 {sT1}, {sW}, 4")
    em.salu(f"s_mul_i32 {sLWQ}, {sW}, 6144")
    for i in range(6):
        em.valu("v_add_u32", C, 64*i, vL)
        div24(em, row, pos, C, t)
        em.valu("v_add_u32", row, sT1, row)
        em.valu("v_bfe_u32", f, row, 1, 1)
        em.valu("v_bfe_u32", t, row, 3, 1)
        em.valu("v_lshl_or_b32", f, t, 1, f)
        em.valu("v_lshrrev_b32", t, 1, pos)
        em.valu("v_xor_b32", t, t, f)
        em.valu("v_and_b32", pos, 1, pos)
        em.valu("v_lshlrev_b32", pos, 4, pos)
        em.valu("v_lshl_or_b32", t, t, 5, pos)
        em.valu("v_mul_u32_u24", row, 12288, row)
        em.valu("v_add_u32", vD[i], row, t)

def pat_x(em):
    row, pos, f = vT[3], vT[4], vT[5]
    for par in range(2):
        em.valu("v_lshrrev_b32", row, 3, vL)
        em.valu("v_and_b32", pos, 7, vL)
        em.valu("v_lshrrev_b32", f, 4, vL)
        if par: em.valu("v_add_u32", f, 4, f)
        em.valu("v_xor_b32", pos, pos, f)
        em.valu("v_lshlrev_b32", pos, 4, pos)
        em.valu("v_mul_u32_u24", row, 1280, row)
        em.valu("v_add_u32", vD[par], row, pos)

def pat_k(em, dst, par):
    C, row, pos, t, f = vT[0], vT[3], vT[4], vT[5], vT[6]
    for i in range(3):
        em.valu("v_add_u32", C, 64*i, vL)
        div24(em, row, pos, C, t)
        em.valu("v_lshrrev_b32", f, 1, row)
        if isinstance(par, Reg): em.valu("v_add_u32", f, par, f)
        elif par: em.valu("v_add_u32", f, 4*par, f)
        em.valu("v_xor_b32", pos, pos, f)
        em.valu("v_lshlrev_b32", pos, 4, pos)
        em.valu("v_mul_u32_u24", row, 384, row)
        em.valu("v_add_u32", dst[i], row, pos)

def common_addr(em, u, g):
    t0, t1, t2, t3 = vT[0], vT[3], vT[4], vT[5]
    f = vT[6]
    em.salu(f"s_and_b32 {sT1}, {sW}, 1")
    em.salu(f"s_lshr_b32 {sT2}, {sW}, 1")
    em.valu("v_lshrrev_b32", t0, 2, u)
    em.valu("v_and_b32", t1, 3, u)
    em.valu("v_lshl_add_u32", t2, g, 3, t0)
    em.valu("v_mul_u32_u24", t2, 384, t2)
    em.valu("v_lshl_add_u32", t2, t1, 3, t2)
    em.valu("v_add_u32", t2, WR, t2)
    em.valu("v_bfe_u32", f, u, 3, 1)
    em.valu("v_and_b32", t3, 1, g)
    em.valu("v_lshl_or_b32", f, t3, 1, f)
    em.salu(f"s_mul_i32 {sT3}, {sT2}, 6")
    for dt in range(6):
        em.salu(f"s_add_u32 {sT0}, {sT3}, {dt}")
        em.valu("v_xor_b32", t3, sT0, f)
        em.valu("v_lshl_add_u32", vA[dt], t3, 5, t2)
    em.salu(f"s_mul_i32 {sT0}, {sT1}, {80*128}")
    em.salu(f"s_add_u32 {sT0}, {sT0}, {XR}")
    em.valu("v_lshlrev_b32", t0, 7, u)
    em.valu("v_add_u32", t0, sT0, t0)
    em.valu("v_bfe_u32", f, u, 1, 3)
    em.valu("v_xor_b32", t1, g, f)
    em.valu("v_lshl_add_u32", vB[0], t1, 4, t0)
    em.valu("v_xor_b32", vB[1], 64, vB[0])
    em.salu(f"s_mul_i32 {sT0}, {sT2}, {30*1024}")
    em.salu(f"s_mul_i32 {sT3}, {sT1}, {5*1024}")
    em.salu(f"s_add_u32 {sT0}, {sT0}, {sT3}")
    em.salu(f"s_add_u32 {sT0}, {sT0}, {QX}")
    em.valu("v_lshrrev_b32", t0, 1, g)
    em.valu("v_lshl_add_u32", t0, t0, 4, u)
    em.valu("v_lshlrev_b32", t0, 4, t0)
    em.valu("v_and_b32", t1, 1, g)
    em.valu("v_lshl_add_u32", t0, t1, 3, t0)
    em.valu("v_add_u32", vQW, sT0, t0)
    em.salu(f"s_add_u32 {sT0}, {sT3}, {QX}")
    em.valu("v_lshlrev_b32", t0, 4, vL)
    em.valu("v_add_u32", vQR, sT0, t0)
    em.salu(f"s_mul_i32 {sT0}, {sT2}, 12288")
    em.valu("v_mul_u32_u24", t0, 384, u)
    em.valu("v_add_u32", t0, sT0, t0)
    em.valu("v_bfe_u32", f, u, 1, 3)
    em.valu("v_xor_b32", t1, g, f)
    em.valu("v_lshl_add_u32", vKb[0], t1, 4, t0)
    em.valu("v_xor_b32", t1, 4, t1)
    em.valu("v_lshl_add_u32", vKb[1], t1, 4, t0)
    em.salu(f"s_lshl_b32 {sT0}, {sT1}, 2")
    pat_k(em, vKD, sT0)
    em.salu(f"s_mul_i32 {sLK}, {sW}, 3072")
    em.valu("v_lshrrev_b32", t0, 3, vL)
    em.valu("v_mul_u32_u24", t0, 384, t0)
    em.valu("v_bfe_u32", t1, vL, 1, 2)
    em.valu("v_bfe_u32", f, vL, 4, 2)
    em.valu("v_xor_b32", t1, t1, f)
    em.valu("v_lshl_add_u32", t0, t1, 5, t0)
    em.valu("v_and_b32", t1, 1, vL)
    em.valu("v_lshl_add_u32", vVD, t1, 4, t0)
    em.salu(f"s_lshl_b32 {sLV}, {sW}, 12")
    em.salu(f"s_lshl_b32 {sT0}, {sT2}, 8")
    em.salu(f"s_lshl_b32 {sT3}, {sT1}, 5")
    em.salu(f"s_add_u32 {sT0}, {sT0}, {sT3}")
    em.salu(f"s_mul_i32 {sVsrc}, {sT0}, 384")
    em.valu("v_lshrrev_b32", t0, 2, u)
    em.valu("v_lshl_add_u32", t1, g, 2, t0)
    em.valu("v_bfe_u32", f, t1, 1, 2)
    em.salu(f"s_lshl_b32 {sT0}, {sT2}, 1")
    em.valu("v_xor_b32", f, sT0, f)
    em.valu("v_lshlrev_b32", t1, 7, t1)
    em.valu("v_lshl_add_u32", t1, f, 5, t1)
    em.valu("v_and_b32", t0, 3, u)
    em.valu("v_lshl_add_u32", t1, t0, 3, t1)
    em.salu(f"s_lshl_b32 {sT0}, {sT2}, 13")
    em.valu("v_add_u32", vVb, sT0, t1)

def q_reads(em, buf, wslot, xslot, sp):
    out = []
    for qt in range(5):
        out.append(lambda qt=qt: em.ds_read("ds_read_b128", qB(buf, qt), vB[sp], xslot*XSLOT + qt*2048))
    for dt in range(6):
        for hf in range(2):
            out.append(lambda dt=dt, hf=hf: em.ds_read("ds_read_b64_tr_b16", qA(buf, dt).sub(2*hf, 2), vA[dt], wslot*WSLOT + hf*1536))
    order = [0, 5, 6, 1, 2, 7, 8, 3, 4, 9, 10, 11, 12, 13, 14, 15, 16]
    return [out[i] for i in order]

def q_step(em, i, first, dma_fill):
    cur, nxt = i & 1, (i+1) & 1
    mf = []
    for dt in range(6):
        for qt in range(5):
            mf.append(lambda dt=dt, qt=qt: em.mfma(qacc(dt,qt), qA(cur,dt), qB(cur,qt), qacc(dt,qt)))
    n1 = (i+1) % 4
    rd = q_reads(em, nxt, n1, (n1 >> 1) & 1, n1 & 1)
    fill = spread(rd, 0, 20) + dma_fill
    fill.sort(key=lambda x: x[0])
    interleave(em, mf, fill)

EXP = {}
def adv_wq(em):
    if EXP.get("q_fixsrc"): return
    em.salu(f"s_add_u32 {sWqIdx}, {sWqIdx}, 1")
    em.salu(f"s_cmp_eq_u32 {sWqIdx}, 20")
    em.salu(f"s_cselect_b32 {sWqIdx}, 0, {sWqIdx}")
    em.salu(f"s_mul_i32 {sWqOff}, {sWqIdx}, 393216")
def adv_x(em):
    if EXP.get("q_fixsrc"): return
    em.salu(f"s_add_u32 {sXIdx}, {sXIdx}, 1")
    em.salu(f"s_cmp_eq_u32 {sXIdx}, 10")
    em.salu(f"s_cselect_b32 {sXIdx}, 0, {sXIdx}")
    em.salu(f"s_lshl_b32 {sXOff}, {sXIdx}, 7")

def wq_pieces(em, cfg, slot):
    out = []
    for p in range(6):
        out.append(lambda p=p: em.salu(f"s_add_u32 m0, {sLWQ}, {WR + slot*WSLOT + p*1024}"))
        out.append(lambda p=p: em.dma(vD[p], sWQ, sWqOff, flags=cfg.w_flags))
    out.append(lambda: adv_wq(em))
    return out
def x_pieces(em, cfg, slot):
    out = []
    for p in range(20):
        def a(p=p):
            em.salu(f"s_mov_b32 m0, {XR + slot*XSLOT + p*1024}")
            em.salu(f"s_add_u32 {sT1}, {sXOff}, {p*10240}")
        out.append(a)
        out.append(lambda p=p: em.dma(vD[p & 1], sX, sT1, flags=cfg.w_flags))
    out.append(lambda: adv_x(em))
    return out
def kpre_pieces(em, cfg, n0, n1):
    out = []
    for n in range(n0, n1):
        kh, rg, i = n // 12, (n % 12) // 3, n % 3
        def a(n=n, kh=kh, rg=rg):
            em.salu(f"s_add_u32 m0, {sKlds}, {n*1024}")
            em.salu(f"s_add_u32 {sT1}, {sKsrc}, {(256*kh + 8*rg)*384}")
        out.append(a)
        out.append(lambda i=i, rg=rg: em.dma(vD[3*(rg & 1) + i], sK, sT1, flags=cfg.kv_flags))
    return out

def q_zero(em):
    for dt in range(6):
        for qt in range(5):
            for e in range(4): em.valu("v_mov_b32", qacc(dt,qt).sub(e), 0)
def q_prologue_reads(em, cfg):
    em.barrier()
    stamp(em, cfg, 3)
    for f in q_reads(em, 0, 0, 0, 0): f()

def q_phase(em, cfg, u, g):
    role_branch(em)
    pat_wq(em)
    for s in range(4):
        for f in wq_pieces(em, cfg, s): f()
    stamp(em, cfg, 1)
    common_addr(em, u, g)
    q_zero(em)
    stamp(em, cfg, 2)
    em.out("s_waitcnt vmcnt(18)")
    q_prologue_reads(em, cfg)
    em.out("s_waitcnt vmcnt(12) lgkmcnt(0)"); em.barrier()
    stamp(em, cfg, 1)
    em.salu(f"s_mov_b32 {sCnt}, 4")
    em.salu(f"s_mov_b32 {sNL}, 1")
    em.reset_state()
    em.label("K1_LOOP_WQ")
    for i in range(4):
        q_step(em, i, False, [] if EXP.get("q_nodma") else spread(wq_pieces(em, cfg, i), 1, 26))
        em.out("s_waitcnt vmcnt(12) lgkmcnt(0)"); em.dsq = []; em.ds_pend = {}
        em.barrier()
    em.salu(f"s_sub_u32 {sCnt}, {sCnt}, 1")
    em.salu(f"s_cmp_lg_u32 {sCnt}, 0")
    em.salu("s_cbranch_scc1 K1_LOOP_WQ")
    em.salu("s_branch K1_NL")
    em.reset_state()
    em.label("K1_ROLE_X")
    pat_x(em)
    for p in range(2):
        for f in x_pieces(em, cfg, p): f()
    stamp(em, cfg, 1)
    common_addr(em, u, g)
    q_zero(em)
    stamp(em, cfg, 2)
    em.out("s_waitcnt vmcnt(20)")
    q_prologue_reads(em, cfg)
    em.out("s_waitcnt lgkmcnt(0)"); em.barrier()
    stamp(em, cfg, 1)
    em.salu(f"s_mov_b32 {sCnt}, 4")
    em.salu(f"s_mov_b32 {sNL}, 1")
    em.reset_state()
    em.label("K1_LOOP_X")
    for i in range(4):
        fl = spread(x_pieces(em, cfg, (i >> 1) & 1), 0, 27) if ((i & 1) and not EXP.get("q_nodma")) else []
        q_step(em, i, False, fl)
        if i % 2 == 0: em.out("s_waitcnt vmcnt(0) lgkmcnt(0)")
        else: em.out("s_waitcnt lgkmcnt(0)")
        em.dsq = []; em.ds_pend = {}
        em.barrier()
    em.salu(f"s_sub_u32 {sCnt}, {sCnt}, 1")
    em.salu(f"s_cmp_lg_u32 {sCnt}, 0")
    em.salu("s_cbranch_scc1 K1_LOOP_X")
    em.salu("s_branch K1_NL")
    em.reset_state()
    em.label("K1_ROLE_K")
    pat_k(em, vD[0:3], 0)
    pat_k(em, vD[3:6], 1)
    em.salu(f"s_mov_b32 {sKsrc}, 0")
    em.salu(f"s_mov_b32 {sKlds}, 0")
    stamp(em, cfg, 1)
    common_addr(em, u, g)
    q_zero(em)
    stamp(em, cfg, 2)
    q_prologue_reads(em, cfg)
    em.out("s_waitcnt lgkmcnt(0)"); em.barrier()
    stamp(em, cfg, 1)
    em.salu(f"s_mov_b32 {sCnt}, 3")
    em.salu(f"s_mov_b32 {sNL}, 2")
    em.reset_state()
    em.label("K1_LOOP_K")
    for i in range(4):
        em.out("s_waitcnt vmcnt(57)")
        q_step(em, i, False, [] if (EXP.get("q_nodma") or EXP.get("q_nokpre")) else spread(kpre_pieces(em, cfg, 6*i, 6*i+6), 1, 26))
        em.out("s_waitcnt lgkmcnt(0)"); em.dsq = []; em.ds_pend = {}
        em.barrier()
    em.salu(f"s_add_u32 {sKsrc}, {sKsrc}, {32*384}")
    em.salu(f"s_add_u32 {sKlds}, {sKlds}, {KCH}")
    em.salu(f"s_sub_u32 {sCnt}, {sCnt}, 1")
    em.salu(f"s_cmp_lg_u32 {sCnt}, 0")
    em.salu("s_cbranch_scc1 K1_LOOP_K")
    em.reset_state()
    em.label("K1_NL")
    for i in range(4):
        q_step(em, i, False, [])
        if i == 0:
            em.salu(f"s_cmp_eq_u32 {sW}, 3")
            em.salu("s_cbranch_scc1 K1_NL_SKIP")
            em.out("s_waitcnt vmcnt(0)")
            em.label("K1_NL_SKIP")
        em.out("s_waitcnt lgkmcnt(0)"); em.dsq = []; em.ds_pend = {}
        em.barrier()
    em.salu(f"s_sub_u32 {sNL}, {sNL}, 1")
    em.salu(f"s_cmp_lg_u32 {sNL}, 0")
    em.salu("s_cbranch_scc1 K1_NL")

class Chunk:
    def __init__(self, name, size, landed, release):
        self.name, self.size, self.landed, self.release = name, size, landed, release
        self.addr = None; self.issue = None

def plan_chunks():
    ch = []
    for j in range(8): ch.append(Chunk(f"K{j}", KCH, j-1, j+1))
    for v in range(12): ch.append(Chunk(f"V{v}", VCH, 9+v-1, 9+v+1))
    fixed = {"K0": 0, "K1": KCH, "K2": 2*KCH, "K3": 132*KB}
    for c in ch:
        if c.name in fixed: c.addr = fixed[c.name]; c.issue = -2
    reserved = [(SMALL, 4*KB, -10, 1000), (OX, 40*KB, 9+4, 1000)]
    unit = 4*KB
    live = [c for c in ch if c.addr is not None]
    pending = [c for c in ch if c.addr is None]
    for T in range(0, 22):
        while pending:
            c = pending[0]
            found = None
            for a in range(0, LDS_TOTAL - c.size + 1, unit):
                ok = True
                for o in live:
                    if o.release > T and a < o.addr + o.size and o.addr < a + c.size: ok = False; break
                if ok:
                    for (ra, rs, t0, t1) in reserved:
                        if a < ra + rs and ra < a + c.size and t0 < c.release and t1 > T: ok = False; break
                if ok: found = a; break
            if found is None: break
            c.addr = found; c.issue = T; live.append(c); pending.pop(0)
    assert not pending
    for c in ch: assert c.issue <= c.landed - 1 or c.issue < 0, (c.name, c.issue, c.landed)
    return {c.name: c for c in ch}

def k_pieces(em, cfg, c, j):
    out = []
    for kh in range(2):
        for i in range(3):
            def a(kh=kh, i=i):
                em.salu(f"s_add_u32 m0, {sLK}, {c.addr + kh*12288 + i*1024}")
                em.salu(f"s_add_u32 {sT1}, {sLK}, {(256*kh + 32*j)*384}")
            out.append(a)
            out.append(lambda i=i: em.dma(vKD[i], sK, sT1, tag=c.name, flags=cfg.kv_flags))
    return out
def v_pieces(em, cfg, c, v):
    out = []
    pn, qd = v // 4, v % 4
    for i in range(4):
        def a(i=i):
            em.salu(f"s_add_u32 m0, {sLV}, {c.addr + i*1024}")
            em.salu(f"s_add_u32 {sT1}, {sVsrc}, {(64*qd + 8*i)*384 + pn*128}")
        out.append(a)
        out.append(lambda: em.dma(vVD, sV, sT1, tag=c.name, flags=cfg.kv_flags))
    return out
def chunk_pieces(em, cfg, plan, T):
    out = []
    for c in plan.values():
        if c.issue == T:
            idx = int(c.name[1:])
            out += k_pieces(em, cfg, c, idx) if c.name[0] == "K" else v_pieces(em, cfg, c, idx)
    return out
def wait_landed(em, plan, T, lgkm=None):
    did = False
    for c in plan.values():
        if c.landed == T:
            n0 = len(em.lines); em.wait_tag(c.name, extra_lgkm=lgkm); did = did or len(em.lines) > n0
    if not did and lgkm is not None: em.wait(lgkm=lgkm)

def dump_regs(em, cfg, name, regs_list, slot_base):
    pass

def q_exchange(em, cfg, plan):
    em.reset_state()
    stamp(em, cfg, 5)
    em.nop(8)
    c3 = plan["K3"]
    kp = k_pieces(em, cfg, c3, 3)
    tmp = [V(QAF + 2*i, 2) for i in range(12)]
    n = 0; ki = 0
    for dt in range(6):
        for qt in range(5):
            acc = qacc(dt, qt); t = tmp[n % 12]
            em.valu("v_cvt_pk_bf16_f32", t.sub(0), acc.sub(0), acc.sub(1))
            em.valu("v_cvt_pk_bf16_f32", t.sub(1), acc.sub(2), acc.sub(3))
            em.ds_write("ds_write_b64", vQW, t, ((dt >> 1)*10 + qt)*1024 + (dt & 1)*512)
            if ki < len(kp) and n % 2 == 0:
                kp[ki](); ki += 1
            n += 1
    while ki < len(kp): kp[ki](); ki += 1
    em.wait(lgkm=0)
    em.barrier()
    for s in range(6):
        for qt in range(5):
            em.ds_read("ds_read_b128", Qf(s, qt), vQR, (s*10 + qt)*1024)
    em.wait(vm=len([x for x in em.vmq]), lgkm=0)
    em.barrier()
    stamp(em, cfg, 6)

def k_base(em, st, addr):
    em.valu("v_add_u32", vKc[st][0], addr, vKb[0])
    em.valu("v_add_u32", vKc[st][1], addr, vKb[1])
def k_read(em, n_glob):
    j, r = divmod(n_glob, 12); ktp, s = divmod(r, 6)
    em.ds_read("ds_read_b128", Kf(n_glob), vKc[j & 1][s & 1], ktp*6144 + (s >> 1)*128)

def max_ops(em, kt):
    out = []
    tmp = [vT[0], vT[1], vT[2], vT[3]]
    for qt in range(5):
        s = Sreg(kt, qt)
        if s.k == "a":
            def rd(s=s):
                for e in range(4): em.valu("v_accvgpr_read_b32", tmp[e], s.sub(e))
            out.append(rd)
            src = tmp
        else:
            src = [s.sub(e) for e in range(4)]
        if kt == 0:
            out.append(lambda qt=qt, src=src: em.valu("v_max3_f32", vM[qt], src[0], src[1], src[2]))
            out.append(lambda qt=qt, src=src: em.valu("v_max_f32", vM[qt], vM[qt], src[3]))
        else:
            out.append(lambda qt=qt, src=src: em.valu("v_max3_f32", vM[qt], vM[qt], src[0], src[1]))
            out.append(lambda qt=qt, src=src: em.valu("v_max3_f32", vM[qt], vM[qt], src[2], src[3]))
    return out

def s_phase(em, cfg, plan):
    k_base(em, 0, plan["K0"].addr)
    for n in range(3): k_read(em, n)
    for j in range(8):
        T = j
        dma = chunk_pieces(em, cfg, plan, T)
        for ktp in range(2):
            kt = 2*j + ktp
            mf = []; fill = []
            for s in range(6):
                n = 12*j + 6*ktp + s
                for qt in range(5):
                    mf.append(lambda s=s, qt=qt, n=n, kt=kt: em.mfma(Sreg(kt,qt), Kf(n), Qf(s,qt), Sreg(kt,qt) if s else 0))
                nn = n + 3
                if nn < 96:
                    if nn % 12 == 0:
                        fill.append((5*s + 0, lambda nn=nn: k_base(em, (nn//12) & 1, plan[f"K{nn//12}"].addr)))
                    fill.append((5*s + 1, lambda nn=nn: k_read(em, nn)))
            if kt > 0: fill += spread(max_ops(em, kt-1), 3, 29)
            half = (len(dma) + 1)//2; half += half & 1
            part = dma[:half] if ktp == 0 else dma[half:]
            fill += spread(part, 1, 28)
            fill.sort(key=lambda x: x[0])
            interleave(em, mf, fill)
        wait_landed(em, plan, T+1)
        em.barrier()
        stamp(em, cfg, 7 + j)
    for f in max_ops(em, 15): f()

def softmax(em, cfg, plan):
    T = 8
    dma = chunk_pieces(em, cfg, plan, T)
    t0, t1 = vT[0], vT[1]
    for qt in range(5):
        em.valu("v_mov_b32", t0, vM[qt])
        em.valu("v_permlane16_swap_b32", vM[qt], t0)
        em.valu("v_max_f32", vM[qt], vM[qt], t0)
        em.valu("v_mov_b32", t0, vM[qt])
        em.valu("v_permlane32_swap_b32", vM[qt], t0)
        em.valu("v_max_f32", vM[qt], vM[qt], t0)
    em.valu("v_and_b32", t0, 15, vL)
    em.valu("v_lshlrev_b32", t0, 2, t0)
    em.salu(f"s_mul_i32 {sT1}, {sW}, 320")
    em.salu(f"s_add_u32 {sT1}, {sT1}, {MX}")
    em.valu("v_add_u32", vMW, sT1, t0)
    em.salu(f"s_xor_b32 {sT1}, {sW}, 2")
    em.salu(f"s_mul_i32 {sT1}, {sT1}, 320")
    em.salu(f"s_add_u32 {sT1}, {sT1}, {MX}")
    em.valu("v_add_u32", vMR, sT1, t0)
    for qt in range(5): em.ds_write("ds_write_b32", vMW, vM[qt], qt*64)
    em.wait(lgkm=0)
    em.barrier()
    tm = [vT[2], vT[3], vT[4], vT[5], vT[6]]
    for qt in range(5): em.ds_read("ds_read_b32", tm[qt], vMR, qt*64)
    for f in dma: f()
    for qt in range(5):
        em.valu("v_max_f32", vM[qt], vM[qt], tm[qt])
        em.valu("v_mul_f32", vM[qt], sC, vM[qt])
    def do_block(src8, dst4):
        for e in range(8): em.valu("v_fma_f32", src8[e], src8[e], sC, ("-" + str(mq), mq))
        for e in range(8): em.valu("v_exp_f32", src8[e], src8[e])
        for e in range(4): em.valu("v_cvt_pk_bf16_f32", dst4.sub(e), src8[2*e], src8[2*e+1])
    for j in range(3, 8):
        for qt in range(5):
            mq = vM[qt]
            blk = V(48 + ((j-3)*5+qt)*8, 8)
            do_block([blk.sub(e) for e in range(8)], Preg(j, qt))
    tmpb = [15, 16, 17, 18, 19, 20]
    k = 0
    for j in range(3):
        for qt in range(5):
            mq = vM[qt]
            h0, h1 = hole(tmpb[k % 6]), hole(tmpb[(k+1) % 6]); k += 2
            src = [h0.sub(e) for e in range(4)] + [h1.sub(e) for e in range(4)]
            ab = A(136 + (j*5+qt)*8, 8)
            for e in range(8): em.valu("v_accvgpr_read_b32", src[e], ab.sub(e))
            do_block(src, Preg(j, qt))
    for e in range(4): em.valu("v_mov_b32", vOnes.sub(e), 0x3f803f80)

def v_base(em, st, addr):
    em.valu("v_add_u32", vVc[st][0], addr, vVb)
    for a in range(1, 4): em.valu("v_xor_b32", vVc[st][a], a << 5, vVc[st][0])
def v_read(em, n_glob):
    v, r = divmod(n_glob, 8); jj, a = divmod(r, 4)
    for hf in range(2):
        em.ds_read("ds_read_b64_tr_b16", Vf(n_glob).sub(2*hf, 2), vVc[v & 1][a], jj*4096 + hf*2048)

def pv_addr_setup(em):
    t0 = vT[0]
    em.valu("v_lshlrev_b32", t0, 4, vL)
    em.salu(f"s_mul_i32 {sT1}, {sW}, 10240"); em.salu(f"s_add_u32 {sT1}, {sT1}, {OX}")
    em.valu("v_add_u32", vOW, sT1, t0)
    em.salu(f"s_xor_b32 {sT1}, {sW}, 2"); em.salu(f"s_mul_i32 {sT1}, {sT1}, 10240"); em.salu(f"s_add_u32 {sT1}, {sT1}, {OX}")
    em.valu("v_add_u32", vOR, sT1, t0)
    em.salu(f"s_lshr_b32 {sT1}, {sW}, 1"); em.salu(f"s_mul_i32 {sT1}, {sT1}, 10240")
    em.salu(f"s_and_b32 {sT2}, {sW}, 1"); em.salu(f"s_mul_i32 {sT2}, {sT2}, 5120")
    em.salu(f"s_add_u32 {sT1}, {sT1}, {sT2}"); em.salu(f"s_add_u32 {sT1}, {sT1}, {sOoff}")
    em.valu("v_add_u32", vOS, sT1, t0)
    em.valu("v_add_u32", vLW, LX - MX, vMW)
    em.valu("v_add_u32", vLR, LX - MX, vMR)

def epi_send(em, pn):
    st = pn & 1; out = []
    for a in (2, 3):
        for qt in range(5):
            out.append(lambda a=a, qt=qt: em.ds_write("ds_write_b128", vOW, Oacc(st, a, qt), ((a-2)*5+qt)*1024))
    if pn == 0:
        for qt in range(5):
            def f(qt=qt):
                em.valu("v_accvgpr_read_b32", vR[qt], Lacc(qt).sub(0))
                em.ds_write("ds_write_b32", vLW, vR[qt], qt*64)
            out.append(f)
    return out
def epi_recv(em, cfg, pn):
    st = pn & 1; out = []
    T = lambda a, qt: hole(15 + a*5 + qt)
    if pn == 0:
        tl = [vT[0], vT[1], vT[2], vT[3], vT[4]]
        for qt in range(5): out.append(lambda qt=qt: em.ds_read("ds_read_b32", tl[qt], vLR, qt*64))
    for qt in range(5):
        for a in range(2):
            out.append(lambda a=a, qt=qt: em.ds_read("ds_read_b128", T(a, qt), vOR, (a*5+qt)*1024))
    if pn == 0:
        for qt in range(5):
            out.append(lambda qt=qt: em.valu("v_add_f32", vR[qt], vR[qt], tl[qt]))
            out.append(lambda qt=qt: em.valu("v_rcp_f32", vR[qt], vR[qt]))
    tt = [vT[5], vT[6]]
    for qt in range(5):
        for a in range(2):
            for e in range(4):
                t = tt[e & 1]
                out.append(lambda a=a, qt=qt, e=e, t=t: em.valu("v_accvgpr_read_b32", t, Oacc(st, a, qt).sub(e)))
                out.append(lambda a=a, qt=qt, e=e, t=t: em.valu("v_add_f32", T(a,qt).sub(e), T(a,qt).sub(e), t))
                out.append(lambda a=a, qt=qt, e=e: em.valu("v_mul_f32", T(a,qt).sub(e), T(a,qt).sub(e), vR[qt]))
        d = T(0, qt); s1 = T(1, qt)
        out.append(lambda d=d: em.valu("v_cvt_pk_bf16_f32", d.sub(0), d.sub(0), d.sub(1)))
        out.append(lambda d=d: em.valu("v_cvt_pk_bf16_f32", d.sub(1), d.sub(2), d.sub(3)))
        out.append(lambda d=d, s1=s1: em.valu("v_cvt_pk_bf16_f32", d.sub(2), s1.sub(0), s1.sub(1)))
        out.append(lambda d=d, s1=s1: em.valu("v_cvt_pk_bf16_f32", d.sub(3), s1.sub(2), s1.sub(3)))
        out.append(lambda d=d, qt=qt: em.buf_store("buffer_store_dwordx4", d, vOS, sO, sT2, offset=0) if False else store_o(em, cfg, d, pn, qt))
    return out
def store_o(em, cfg, d, pn, qt):
    em.salu(f"s_mov_b32 {sT2}, {pn*20480 + qt*1024}")
    em.buf_store("buffer_store_dwordx4", d, vOS, sO, sT2, flags=cfg.o_flags, tag="O")

def pv_phase(em, cfg, plan):
    stamp(em, cfg, 15)
    pv_addr_setup(em)
    wait_landed(em, plan, 9)
    em.barrier()
    stamp(em, cfg, 16)
    v_base(em, 0, plan["V0"].addr)
    for n in range(3): v_read(em, n)
    pend_send = []; pend_recv = []
    for v in range(12):
        pn, qd = divmod(v, 4); st = pn & 1
        T = 9 + v
        dma = chunk_pieces(em, cfg, plan, T)
        mf = []; fill = []
        for jj in range(2):
            j = 2*qd + jj
            for a in range(4):
                n = 8*v + 4*jj + a
                base = len(mf)
                for qt in range(5):
                    first = (qd == 0 and jj == 0)
                    mf.append(lambda a=a, qt=qt, n=n, j=j, first=first: em.mfma(Oacc(st,a,qt), Vf(n), Preg(j,qt), 0 if first else Oacc(st,a,qt)))
                nn = n + 3
                if nn < 96:
                    if nn % 8 == 0:
                        fill.append((base, lambda nn=nn: v_base(em, (nn//8) & 1, plan[f"V{nn//8}"].addr)))
                    fill.append((base + 1, lambda nn=nn: v_read(em, nn)))
            if pn == 0:
                for qt in range(5):
                    mf.append(lambda qt=qt, j=j: em.mfma(Lacc(qt), vOnes, Preg(j,qt), 0 if j == 0 else Lacc(qt)))
        L = len(mf)
        fill += spread(dma, 1, L-2)
        if qd == 0 and pn > 0:
            fill += spread(epi_send(em, pn-1), 2, L-4)
        if qd == 1 and pn > 0:
            r = epi_recv(em, cfg, pn-1); h = len(r)//2
            fill += spread(r[:h], 0, L-1); pend_recv = r[h:]
        if qd == 2 and pn > 0:
            fill += spread(pend_recv, 0, L-1); pend_recv = []
        fill.sort(key=lambda x: x[0])
        interleave(em, mf, fill)
        if v < 11:
            lg = 0 if (qd == 0 and pn > 0) else None
            wait_landed(em, plan, T+1, lgkm=lg)
            em.barrier()
            stamp(em, cfg, 17 + v)
    stamp(em, cfg, 28)
    for f in epi_send(em, 2): f()
    em.wait(lgkm=0)
    em.barrier()
    for f in epi_recv(em, cfg, 2): f()

def gen_k1(cfg):
    EXP.clear(); EXP.update(getattr(cfg, "exp", {}))
    em = Em()
    em.label("attn_kernel")
    u, g = prologue(em, cfg)
    q_phase(em, cfg, u, g)
    plan = plan_chunks()
    q_exchange(em, cfg, plan)
    s_phase(em, cfg, plan)
    softmax(em, cfg, plan)
    pv_phase(em, cfg, plan)
    stamp(em, cfg, 29)
    if getattr(cfg, "stamps", None):
        em.out("s_waitcnt vmcnt(0)")
        stamp(em, cfg, 30)
    stamp_flush(em, cfg, 0, sW, sO)
    em.label("K1_END")
    em.out("s_endpgm")
    return em, plan

if __name__ == "__main__":
    cfg = Cfg(); cfg.o_flags = ""
    em, plan = gen_k1(cfg)
    for c in plan.values(): print(c.name, c.addr//1024, c.issue, c.landed, c.release)
    print(em.stats)
    print(len(em.lines))
```

```python
from emit import *
from k1 import srd, srd_off, WS_O, WS_PART, KB, stamp, stamp_flush

NSLOT = 8
SLOT = 20*KB
sO, sWO, sP = S(8,4), S(12,4), S(16,4)
sW, sB, sJ, sCc = S(28), S(29), S(30), S(31)
sT0, sT1, sT2, sT3 = S(46), S(47), S(48), S(49)
sIdx, sSrc, sLds, sCnt = S(32), S(33), S(34), S(35)
sStep = S(50)
sPoff = S(51)
sIsO = S(52)
vL = V(0)
vT = [V(i) for i in range(1, 8)]
vA = [V(8+i) for i in range(5)]
vB = V(13)
vD = [V(16+i) for i in range(5)]
vPS = V(22)
ACC = 48; AF = 152; BF = 192
def acc(nt, qt): return V(ACC + (nt*5+qt)*4, 4)
def fA(buf, nt): return V(AF + buf*20 + nt*4, 4)
def fB(buf, qt): return V(BF + buf*20 + qt*4, 4)

def reads(em, buf, slot):
    out = []
    base = (slot % 3) * SLOT; grp = slot // 3
    B = lambda qt: em.ds_read("ds_read_b128", fB(buf, qt), vBg[grp], base + qt*1024)
    def Ar(nt, hf): em.ds_read("ds_read_b64_tr_b16", fA(buf, nt).sub(2*hf, 2), vAg[grp][nt], base + 10*KB + hf*16*320)
    seq = [("B",0),("A",0,0),("A",0,1),("B",1),("B",2),("A",1,0),("A",1,1),("B",3),("B",4),("A",2,0),("A",2,1),("A",3,0),("A",3,1),("A",4,0),("A",4,1)]
    for it in seq:
        if it[0] == "B": out.append(lambda qt=it[1]: B(qt))
        else: out.append(lambda nt=it[1], hf=it[2]: Ar(nt, hf))
    return out
vAg = [[V(24+i) for i in range(5)], [V(29+i) for i in range(5)], [V(34+i) for i in range(5)]]
vBg = [V(39), V(40), V(41)]

def pieces(em, cfg, slot):
    out = []
    for p in range(5):
        out.append(lambda p=p: em.salu(f"s_add_u32 m0, {sLds}, {slot*SLOT + p*1024}"))
        out.append(lambda p=p: em.dma(vD[p], S(20,4), sSrc, flags=cfg.k2_flags))
    def adv():
        em.salu(f"s_add_u32 {sIdx}, {sIdx}, 1")
        em.salu(f"s_cmp_eq_u32 {sIdx}, 24")
        em.salu(f"s_cselect_b32 {sIdx}, 0, {sIdx}")
        em.salu(f"s_mul_i32 {sSrc}, {sIdx}, {sStep}")
    out.append(adv)
    return out

def step(em, cfg, i, with_dma):
    cur, nxt = i & 1, (i+1) & 1
    mf = []
    for nt in range(5):
        for qt in range(5):
            mf.append(lambda nt=nt, qt=qt: em.mfma(acc(nt,qt), fA(cur,nt), fB(cur,qt), acc(nt,qt)))
    fill = spread(reads(em, nxt, (i+1) % NSLOT), 0, 17)
    if with_dma: fill += spread(pieces(em, cfg, i), 1, 22)
    fill.sort(key=lambda x: x[0])
    interleave(em, mf, fill)

def gen_k2(cfg):
    em = Em()
    em.label("oproj_kernel")
    em.salu("s_cmp_ge_u32 s2, 256")
    em.salu("s_cbranch_scc1 K2_END")
    if getattr(cfg, "stamps", None):
        for i in range(32): em.salu(f"s_mov_b32 s{66+i}, 0")
    stamp(em, cfg, 0)
    em.out("s_load_dwordx2 s[36:37], s[0:1], 32")
    em.out("s_load_dwordx2 s[38:39], s[0:1], 56")
    em.valu("v_lshrrev_b32", vT[0], 6, V(0))
    em.valu("v_and_b32", vL, 63, V(0))
    em.valu("v_readfirstlane_b32", sW, vT[0])
    em.salu(f"s_and_b32 {sJ}, s2, 7")
    em.salu("s_lshr_b32 s3, s2, 3")
    em.salu(f"s_and_b32 {sCc}, s3, 3")
    em.salu(f"s_lshr_b32 {sB}, s3, 2")
    em.salu(f"s_mul_i32 {sT0}, {sB}, 3")
    em.salu(f"s_mul_i32 {sT1}, {sCc}, 7")
    em.salu(f"s_add_u32 {sT0}, {sT0}, {sT1}")
    em.salu(f"s_cmp_ge_u32 {sT0}, 24")
    em.salu(f"s_cselect_b32 {sT1}, 24, 0")
    em.salu(f"s_sub_u32 {sIdx}, {sT0}, {sT1}")
    u, g = vT[1], vT[2]
    em.valu("v_and_b32", u, 15, vL)
    em.valu("v_lshrrev_b32", g, 4, vL)
    em.out("s_waitcnt lgkmcnt(0)")
    em.salu(f"s_cmp_ge_u32 {sW}, 2")
    em.salu("s_cbranch_scc1 K2_ROLE_O")
    em.salu(f"s_mul_i32 {sT0}, {sJ}, {768*1280}")
    em.salu(f"s_mul_i32 {sT1}, {sCc}, 320")
    em.salu(f"s_add_u32 {sT0}, {sT0}, {sT1}")
    em.salu(f"s_sub_u32 {sT1}, 7864320, {sT0}")
    srd_off(em, S(20,4), "s36", "s37", sT0, sT1)
    em.salu(f"s_mov_b32 {sStep}, {32*1280}")
    em.salu(f"s_mul_i32 {sLds}, {sW}, 5120")
    em.salu(f"s_add_u32 {sLds}, {sLds}, {10*KB}")
    C, row, pos, t, f = vT[0], vT[3], vT[4], vT[5], vT[6]
    em.salu(f"s_mul_i32 {sT0}, {sW}, 320")
    for p in range(5):
        em.valu("v_add_u32", C, 64*p, vL)
        em.valu("v_add_u32", C, sT0, C)
        em.valu("v_mul_u32_u24", row, 3277, C)
        em.valu("v_lshrrev_b32", row, 16, row)
        em.valu("v_mul_u32_u24", t, 20, row)
        em.valu("v_sub_u32", pos, C, t)
        em.valu("v_bfe_u32", f, row, 2, 1)
        em.valu("v_lshrrev_b32", t, 1, pos)
        em.valu("v_xor_b32", t, t, f)
        em.valu("v_and_b32", pos, 1, pos)
        em.valu("v_lshlrev_b32", pos, 4, pos)
        em.valu("v_lshl_or_b32", t, t, 5, pos)
        em.valu("v_mul_u32_u24", row, 1280, row)
        em.valu("v_add_u32", vD[p], row, t)
    em.salu("s_branch K2_ROLE_DONE")
    em.label("K2_ROLE_O")
    em.salu(f"s_lshl_b32 {sT0}, {sB}, 5")
    em.salu(f"s_lshl_b32 {sT1}, {sJ}, 2")
    em.salu(f"s_add_u32 {sT0}, {sT0}, {sT1}")
    em.salu(f"s_mul_i32 {sT0}, {sT0}, 61440")
    srd_off(em, S(20,4), "s38", "s39", sT0, 4*61440)
    em.salu(f"s_mov_b32 {sStep}, 10240")
    em.salu(f"s_sub_u32 {sT0}, {sW}, 2")
    em.salu(f"s_mul_i32 {sLds}, {sT0}, 5120")
    em.valu("v_lshlrev_b32", vT[0], 4, vL)
    em.valu("v_add_u32", vT[0], sLds, vT[0])
    for p in range(5): em.valu("v_add_u32", vD[p], p*1024, vT[0])
    em.label("K2_ROLE_DONE")
    em.reset_state()
    em.salu(f"s_mul_i32 {sSrc}, {sIdx}, {sStep}")
    for s in range(NSLOT):
        for f in pieces(em, cfg, s): f()
    stamp(em, cfg, 5)
    em.salu(f"s_and_b32 {sT0}, {sW}, 1")
    em.salu(f"s_lshr_b32 {sT1}, {sW}, 1")
    t0, t1, t2, f = vT[0], vT[3], vT[4], vT[5]
    em.salu(f"s_mul_i32 {sT2}, {sT0}, 5120")
    em.valu("v_lshlrev_b32", t0, 4, vL)
    em.valu("v_add_u32", vBg[0], sT2, t0)
    em.valu("v_add_u32", vBg[1], 3*SLOT, vBg[0])
    em.valu("v_add_u32", vBg[2], 6*SLOT, vBg[0])
    em.valu("v_lshrrev_b32", t0, 2, u)
    em.valu("v_lshl_add_u32", t0, g, 2, t0)
    em.valu("v_mul_u32_u24", t0, 320, t0)
    em.valu("v_and_b32", t1, 3, u)
    em.valu("v_lshl_add_u32", t0, t1, 3, t0)
    em.valu("v_and_b32", f, 1, g)
    em.salu(f"s_mul_i32 {sT2}, {sT1}, 5")
    for nt in range(5):
        em.salu(f"s_add_u32 {sT3}, {sT2}, {nt}")
        em.valu("v_xor_b32", t1, sT3, f)
        em.valu("v_lshl_add_u32", vAg[0][nt], t1, 5, t0)
        em.valu("v_add_u32", vAg[1][nt], 3*SLOT, vAg[0][nt])
        em.valu("v_add_u32", vAg[2][nt], 6*SLOT, vAg[0][nt])
    em.salu(f"s_lshl_b32 {sT2}, {sB}, 2"); em.salu(f"s_add_u32 {sT2}, {sT2}, {sCc}")
    em.salu(f"s_lshl_b32 {sT2}, {sT2}, 2"); em.salu(f"s_add_u32 {sT2}, {sT2}, {sW}")
    em.salu(f"s_mul_i32 {sT2}, {sT2}, 200"); em.salu(f"s_add_u32 {sT2}, {sT2}, {sJ}")
    em.salu(f"s_lshl_b32 {sT2}, {sT2}, 10")
    em.salu(f"s_add_u32 {sT2}, {sT2}, {WS_PART}")
    em.valu("v_lshlrev_b32", t0, 4, vL)
    em.valu("v_add_u32", vPS, sT2, t0)
    srd(em, sP, "s38", "s39", 0x10000000)
    for nt in range(5):
        for qt in range(5):
            for e in range(4): em.valu("v_mov_b32", acc(nt,qt).sub(e), 0)
    stamp(em, cfg, 6)
    em.out(f"s_waitcnt vmcnt({5*(NSLOT-1)})")
    em.barrier()
    stamp(em, cfg, 7)
    for f in reads(em, 0, 0): f()
    em.out(f"s_waitcnt vmcnt({5*(NSLOT-2)}) lgkmcnt(0)")
    em.barrier()
    stamp(em, cfg, 1)
    em.salu(f"s_mov_b32 {sCnt}, 2")
    em.reset_state()
    em.label("K2_LOOP")
    for i in range(NSLOT):
        step(em, cfg, i, True)
        em.out(f"s_waitcnt vmcnt({5*(NSLOT-2)}) lgkmcnt(0)"); em.dsq = []; em.ds_pend = {}
        em.barrier()
    em.salu(f"s_sub_u32 {sCnt}, {sCnt}, 1")
    em.salu(f"s_cmp_lg_u32 {sCnt}, 0")
    em.salu("s_cbranch_scc1 K2_LOOP")
    em.reset_state()
    for i in range(NSLOT):
        step(em, cfg, i, False)
        if i < NSLOT-1:
            n = max(0, 5*(NSLOT-3-i))
            em.out(f"s_waitcnt vmcnt({n}) lgkmcnt(0)"); em.dsq = []; em.ds_pend = {}
            em.barrier()
    stamp(em, cfg, 2)
    for nt in range(5):
        for qt in range(5):
            em.salu(f"s_mov_b32 {sT0}, {(nt*5+qt)*8*1024}")
            em.buf_store("buffer_store_dwordx4", acc(nt,qt), vPS, sP, sT0, flags=cfg.p_flags)
    stamp(em, cfg, 3)
    if getattr(cfg, "stamps", None):
        em.out("s_waitcnt vmcnt(0)")
        stamp(em, cfg, 4)
    stamp_flush(em, cfg, 131072, sW, sP)
    em.label("K2_END")
    em.out("s_endpgm")
    return em

def gen_k3(cfg):
    em = Em()
    em.label("reduce_kernel")
    em.salu("s_cmp_ge_u32 s2, 800")
    em.salu("s_cbranch_scc1 K3_END")
    if getattr(cfg, "stamps", None):
        for i in range(32): em.salu(f"s_mov_b32 s{66+i}, 0")
    stamp(em, cfg, 0)
    em.out("s_load_dwordx2 s[36:37], s[0:1], 40")
    em.out("s_load_dwordx2 s[38:39], s[0:1], 56")
    em.valu("v_lshrrev_b32", V(1), 6, V(0))
    em.valu("v_and_b32", V(0), 63, V(0))
    em.valu("v_readfirstlane_b32", S(28), V(1))
    em.salu("s_lshl_b32 s3, s2, 2")
    em.salu("s_add_u32 s3, s3, s28")
    em.salu("s_lshl_b32 s29, s3, 13")
    em.salu(f"s_add_u32 s29, s29, {WS_PART}")
    em.valu("v_lshlrev_b32", V(2), 4, V(0))
    em.salu("s_mul_i32 s30, s3, 5243"); em.salu("s_lshr_b32 s30, s30, 17")
    em.salu("s_mul_i32 s31, s30, 25"); em.salu("s_sub_u32 s31, s3, s31")
    em.salu("s_mul_i32 s32, s31, 52"); em.salu("s_lshr_b32 s32, s32, 8")
    em.salu("s_mul_i32 s33, s32, 5"); em.salu("s_sub_u32 s33, s31, s33")
    em.salu("s_and_b32 s34, s30, 1")
    em.salu("s_bfe_u32 s35, s30, 0x10001")
    em.salu("s_bfe_u32 s40, s30, 0x20002")
    em.salu("s_lshr_b32 s41, s30, 4")
    em.salu("s_mul_i32 s41, s41, 160"); em.salu("s_mul_i32 s34, s34, 80"); em.salu("s_add_u32 s41, s41, s34")
    em.salu("s_lshl_b32 s33, s33, 4"); em.salu("s_add_u32 s41, s41, s33"); em.salu("s_mul_i32 s41, s41, 1280")
    em.salu("s_mul_i32 s40, s40, 160"); em.salu("s_mul_i32 s35, s35, 80"); em.salu("s_add_u32 s40, s40, s35")
    em.salu("s_lshl_b32 s32, s32, 4"); em.salu("s_add_u32 s40, s40, s32"); em.salu("s_lshl_b32 s40, s40, 1")
    em.salu("s_add_u32 s41, s41, s40")
    em.valu("v_and_b32", V(3), 15, V(0))
    em.valu("v_mul_u32_u24", V(3), 1280, V(3))
    em.valu("v_lshrrev_b32", V(4), 4, V(0))
    em.valu("v_lshl_add_u32", V(3), V(4), 3, V(3))
    em.out("s_waitcnt lgkmcnt(0)")
    srd(em, S(8,4), "s38", "s39", 0x10000000)
    srd(em, S(12,4), "s36", "s37", 1638400)
    for j in range(8):
        em.buf_load("buffer_load_dwordx4", V(8+4*j, 4), V(2), S(8,4), "s29", offset=0 if j < 4 else 0) if False else None
    for j in range(8):
        if j % 4 == 0 and j: em.salu("s_add_u32 s29, s29, 4096")
        em.buf_load("buffer_load_dwordx4", V(8+4*j, 4), V(2), S(8,4), S(29), offset=(j % 4)*1024, flags=cfg.k3_flags)
    for j in range(1, 8):
        for e in range(4): em.valu("v_add_f32", V(8+e), V(8+e), V(8+4*j+e))
    if getattr(cfg, "probe", None):
        import struct
        c = struct.unpack("<I", struct.pack("<f", float(cfg.probe)))[0]
        for e in range(4): em.valu("v_mul_f32", V(8+e), c, V(8+e))
    em.valu("v_cvt_pk_bf16_f32", V(8), V(8), V(9))
    em.valu("v_cvt_pk_bf16_f32", V(9), V(10), V(11))
    em.buf_store("buffer_store_dwordx2", V(8,2), V(3), S(12,4), S(41))
    if getattr(cfg, "stamps", None):
        em.out("s_waitcnt vmcnt(0)")
        stamp(em, cfg, 1)
    stamp_flush(em, cfg, 262144, S(28), S(8,4))
    em.label("K3_END")
    em.out("s_endpgm")
    return em
```

```python
import sys, os
sys.path.insert(0, os.path.dirname(os.path.abspath(__file__)))
from k1 import gen_k1, Cfg
from k23 import gen_k2, gen_k3

HEADER = """; Kernarg layout (64 bytes): x, k_cache, v_cache, wq, wo, out, debug, ws
; @launch kernel=attn_kernel grid=(256,1,1) block=(256,1,1) lds=163840
; @launch kernel=oproj_kernel grid=(256,1,1) block=(256,1,1) lds=163840
; @launch kernel=reduce_kernel grid=(800,1,1) block=(256,1,1) lds=0
.amdgcn_target "amdgcn-amd-amdhsa--gfx950"
.text
"""
def kd(name, vgpr, acc):
    return f""".amdhsa_kernel {name}
  .amdhsa_next_free_vgpr {vgpr}
  .amdhsa_next_free_sgpr 102
  .amdhsa_accum_offset {acc}
  .amdhsa_group_segment_fixed_size 0
  .amdhsa_kernarg_size 64
  .amdhsa_user_sgpr_count 2
  .amdhsa_user_sgpr_kernarg_segment_ptr 1
  .amdhsa_system_sgpr_workgroup_id_x 1
  .amdhsa_float_denorm_mode_32 3
.end_amdhsa_kernel
"""
def build(cfg):
    parts = [HEADER]
    em1, plan = gen_k1(cfg); em2 = gen_k2(cfg); em3 = gen_k3(cfg)
    for name, em in (("attn_kernel", em1), ("oproj_kernel", em2), ("reduce_kernel", em3)):
        parts.append(f".globl {name}\n.p2align 8\n.type {name},@function\n")
        parts.append(em.text())
    parts.append('.section .rodata,"a"\n')
    for name, vg, ac in (("attn_kernel", 512, 256), ("oproj_kernel", 256, 256), ("reduce_kernel", 48, 48)):
        parts.append(".p2align 6\n" + kd(name, vg, ac))
    return "".join(parts)

def default_cfg():
    cfg = Cfg()
    cfg.o_flags = ""; cfg.k2_flags = ""; cfg.p_flags = ""; cfg.k3_flags = ""
    return cfg

if __name__ == "__main__":
    cfg = default_cfg()
    out = sys.argv[1] if len(sys.argv) > 1 else "standalone__mha_block_cached__near_ridge.s"
    for kv in sys.argv[2:]:
        k, v = kv.split("=", 1)
        if k.startswith("x_"):
            if not hasattr(cfg, "exp"): cfg.exp = {}
            cfg.exp[k[2:]] = v
        else: setattr(cfg, k, v)
    open(out, "w").write(build(cfg))
    print("wrote", out, os.path.getsize(out))
```
